```python
import torch

def _softmax(x, axis=-1):
    return torch.softmax(x, dim=axis)
def _gelu(x):
    return torch.nn.functional.gelu(x, approximate="tanh")
def _silu(x):
    return torch.nn.functional.silu(x)
def _sigmoid(x):
    return torch.sigmoid(x)
def _layernorm(x, axis=-1, eps=1e-5):
    m = x.mean(dim=axis, keepdim=True)
    v = x.var(dim=axis, keepdim=True, unbiased=False)
    return (x - m) / torch.sqrt(v + eps)
def _scatter_add(tgt, idx, src, axis=0):
    return tgt.clone().index_add_(axis, idx, src)
def _segment_sum(src, seg, n):
    out = torch.zeros((n,) + src.shape[1:], dtype=src.dtype)
    return out.index_add_(0, seg, src)
def _pad(x, pw):
    flat = tuple(v for pair in reversed(pw) for v in pair)
    return torch.nn.functional.pad(x, flat)

kernel_name = 'gated_mix__softmax_full_mha__dense_activation_mish__prompt'

def setup_inputs():

    _w = (lambda a: (lambda t: t.to(torch.bfloat16) if t.is_floating_point() else t)(torch.as_tensor(a)))
    def _A_setup():
        B, S, D = 1, 2048, 512
        return {
            "x": _w((lambda *s: torch.randn(*s, dtype=torch.bfloat16) * 0.05)(B, S, D)),
            "wqkv": _w((lambda *s: torch.randn(*s, dtype=torch.bfloat16) * 0.8)(D, 3 * D)),
            "wo": _w((lambda *s: torch.randn(*s, dtype=torch.bfloat16) * 0.05)(D, D)),
        }
    _A_in = _A_setup()

    def _B_setup():
        B, S, D, F = 1, 2048, 512, 1376
        return {
            "x": _w((lambda *s: torch.randn(*s, dtype=torch.bfloat16) * 0.05)(B, S, D)),
            "w1": _w((lambda *s: torch.randn(*s, dtype=torch.bfloat16) * 12.8)(D, F) * (D ** -0.5)),
            "b1": _w((lambda *s: torch.randn(*s, dtype=torch.bfloat16) * 0.2)(F)),
            "w2": _w((lambda *s: torch.randn(*s, dtype=torch.bfloat16) * 0.1)(F, D) * (F ** -0.5)),
        }
    _B_in = _B_setup()

    return {
        "A_x": _A_in["x"],
        "A_wqkv": _A_in["wqkv"],
        "A_wo": _A_in["wo"],
        "B_x": _B_in["x"],
        "B_w1": _B_in["w1"],
        "B_b1": _B_in["b1"],
        "B_w2": _B_in["w2"],
        "gate_w": _w((lambda *s: torch.randn(*s, dtype=torch.bfloat16) * 0.05)(512) * 16.0),
    }

def reference(A_x, A_wqkv, A_wo, B_x, B_w1, B_b1, B_w2, gate_w):
    def _A_ref(x, wqkv, wo):
        B, S, D = x.shape
        H = 32; Dh = D // H
        qkv = (lambda x, *d: x.permute(*d))((x @ wqkv).reshape(B, S, 3, H, Dh), 2, 0, 3, 1, 4)
        q, k, v = qkv[0], qkv[1], qkv[2]
        scale = Dh ** -0.5
        scores = torch.einsum("bhqd,bhkd->bhqk", q, k) * scale
        p = _softmax(scores, axis=-1)
        o = torch.einsum("bhqk,bhkd->bhqd", p, v)
        return (lambda x, *d: x.permute(*d))(o, 0, 2, 1, 3).reshape(B, S, D) @ wo

    def _B_ref(x, w1, b1, w2):
        h = torch.einsum("bsd,df->bsf", x, w1) + b1
        sp = torch.log1p(torch.exp(-torch.abs(h))) + torch.where(h > 0, h, torch.zeros_like(h))
        act = h * torch.tanh(sp)
        return torch.einsum("bsf,fd->bsd", act, w2)

    x = A_x
    g = _sigmoid((x * gate_w).sum(-1, keepdims=True))
    a = _A_ref(x, A_wqkv, A_wo)
    b = _B_ref(x, B_w1, B_b1, B_w2)
    return g * a + (1 - g) * b
```

```python
import sys
NAME = "gated_mix__softmax_full_mha__dense_activation_mish__prompt"

WS_Q = 0
WS_K = 2 << 20
WS_V = 4 << 20
WS_ACT = 6 << 20
WS_O = 12 << 20
WS_G = 14 << 20
WS_B = 16 << 20
WS_SIZE = 268435456
LOG2E = 1.4426950408889634

import struct
def f32hex(x):
    return "0x%08x" % struct.unpack("<I", struct.pack("<f", x))[0]

class A:
    def __init__(self):
        self.l = []
    def __call__(self, s):
        self.l.append("    " + s)
    def lab(self, s):
        self.l.append(s + ":")
    def raw(self, s):
        self.l.append(s)
    def c(self, s):
        self.l.append("    ; " + s)

def vr(b, n=1):
    return f"v{b}" if n == 1 else f"v[{b}:{b+n-1}]"
def sr(b, n=1):
    return f"s{b}" if n == 1 else f"s[{b}:{b+n-1}]"

def srd(a, dst, ptr, size):
    a(f"s_mov_b32 s{dst}, s{ptr}")
    a(f"s_and_b32 s{dst+1}, s{ptr+1}, 0xffff")
    a(f"s_mov_b32 s{dst+2}, {size}")
    a(f"s_mov_b32 s{dst+3}, 0x00020000")

def kernel_header(a, name):
    a.raw(".text")
    a.raw(f".globl {name}")
    a.raw(".p2align 8")
    a.raw(f".type {name},@function")
    a.lab(name)

def kernel_desc(a, name, vgpr, sgpr=102, accum=None):
    if accum is None:
        accum = (vgpr + 3) // 4 * 4
    a.raw('.section .rodata,"a"')
    a.raw(".p2align 6")
    a.raw(f".amdhsa_kernel {name}")
    a.raw(f"  .amdhsa_next_free_vgpr {vgpr}")
    a.raw(f"  .amdhsa_next_free_sgpr {sgpr}")
    a.raw(f"  .amdhsa_accum_offset {accum}")
    a.raw("  .amdhsa_group_segment_fixed_size 0")
    a.raw("  .amdhsa_kernarg_size 88")
    a.raw("  .amdhsa_user_sgpr_count 2")
    a.raw("  .amdhsa_user_sgpr_kernarg_segment_ptr 1")
    a.raw("  .amdhsa_system_sgpr_workgroup_id_x 1")
    a.raw(".end_amdhsa_kernel")

def mish_block(a, regs, bias, tmp):
    n = len(regs)
    t = tmp[:n]; u = tmp[n:2*n]
    for i in range(n): a(f"v_add_f32 v{regs[i]}, v{regs[i]}, v{bias[i]}")
    for i in range(n): a(f"v_mul_f32 v{t[i]}, {f32hex(LOG2E)}, v{regs[i]}")
    for i in range(n): a(f"v_min_f32 v{t[i]}, {f32hex(30.0)}, v{t[i]}")
    for i in range(n): a(f"v_exp_f32 v{t[i]}, v{t[i]}")
    a("s_nop 0")
    for i in range(n): a(f"v_add_f32 v{u[i]}, 2.0, v{t[i]}")
    for i in range(n): a(f"v_mul_f32 v{u[i]}, v{u[i]}, v{t[i]}")
    for i in range(n): a(f"v_add_f32 v{t[i]}, 2.0, v{u[i]}")
    for i in range(n): a(f"v_rcp_f32 v{t[i]}, v{t[i]}")
    a("s_nop 0")
    for i in range(n): a(f"v_mul_f32 v{u[i]}, v{u[i]}, v{t[i]}")
    for i in range(n): a(f"v_mul_f32 v{regs[i]}, v{regs[i]}, v{u[i]}")

def gen_k1(a):
    name = "proj_kernel"
    kernel_header(a, name)
    STG = 40960; XO = 0; WQO = 16384; W1O = 28672; NBUF = 4; NST = 8
    sX, sWQ, sW1, sB1, sWS = 16, 20, 24, 28, 32
    sRB, sCG, sW, sHC, sMH, sNH = 36, 37, 38, 39, 40, 41
    sT = 44
    a("s_cmp_ge_u32 s2, 256")
    a("s_cbranch_scc1 K1_END")
    a("s_load_dwordx4 s[4:7], s[0:1], 0")
    a("s_load_dwordx4 s[8:11], s[0:1], 32")
    a("s_load_dwordx2 s[12:13], s[0:1], 80")
    a("s_and_b32 s44, s2, 7")
    a("s_lshr_b32 s45, s2, 3")
    a("s_and_b32 s46, s44, 3")
    a("s_lshl_b32 s46, s46, 2")
    a("s_and_b32 s47, s45, 3")
    a(f"s_add_u32 s{sRB}, s46, s47")
    a("s_lshr_b32 s46, s44, 2")
    a("s_lshl_b32 s46, s46, 3")
    a("s_lshr_b32 s47, s45, 2")
    a(f"s_add_u32 s{sCG}, s46, s47")
    a(f"s_mul_i32 s46, s{sCG}, 96")
    a(f"s_lshl_b32 s47, s{sCG}, 6")
    a("s_add_u32 s47, s47, 352")
    a(f"s_cmp_lt_u32 s{sCG}, 11")
    a(f"s_cselect_b32 s{sHC}, s46, s47")
    vLane, vT0, vT1, vT2, vT3 = 1, 2, 3, 4, 5
    a(f"v_and_b32 v{vLane}, 63, v0")
    a(f"v_lshrrev_b32 v{vT0}, 6, v0")
    a("s_nop 0")
    a(f"v_readfirstlane_b32 s{sW}, v{vT0}")
    a("s_waitcnt lgkmcnt(0)")
    srd(a, sX, 4, 2048 * 512 * 2)
    srd(a, sWQ, 6, 512 * 1536 * 2)
    srd(a, sW1, 8, 512 * 1376 * 2)
    srd(a, sB1, 10, 1376 * 2)
    srd(a, sWS, 12, WS_SIZE)
    a(f"s_lshr_b32 s{sMH}, s{sW}, 1")
    a(f"s_and_b32 s{sNH}, s{sW}, 1")
    vXo = 6; vWq = [7, 8, 9]; vW1 = [10, 11, 12]
    vXo2 = 13
    a(f"v_lshrrev_b32 v{vT0}, 3, v{vLane}")
    a(f"v_and_b32 v{vT1}, 7, v{vLane}")
    a(f"v_lshrrev_b32 v{vT2}, 1, v{vT0}")
    a(f"v_xor_b32 v{vT3}, v{vT1}, v{vT2}")
    a(f"s_lshl_b32 s44, s{sRB}, 7")
    a(f"s_lshl_b32 s45, s{sW}, 5")
    a("s_add_u32 s44, s44, s45")
    a(f"v_add_u32 v{vT0}, s44, v{vT0}")
    a(f"v_lshlrev_b32 v{vT0}, 10, v{vT0}")
    a(f"v_lshl_add_u32 v{vXo}, v{vT3}, 4, v{vT0}")
    a(f"v_xor_b32 v{vT3}, 4, v{vT3}")
    a(f"v_lshl_add_u32 v{vXo2}, v{vT3}, 4, v{vT0}")
    for j in range(3):
        a(f"v_add_u32 v{vT0}, {j*64}, v{vLane}")
        a(f"v_mul_u32_u24 v{vT1}, 43691, v{vT0}")
        a(f"v_lshrrev_b32 v{vT1}, 19, v{vT1}")
        a(f"v_mul_u32_u24 v{vT2}, 12, v{vT1}")
        a(f"v_sub_u32 v{vT2}, v{vT0}, v{vT2}")
        a(f"s_lshl_b32 s44, s{sW}, 4")
        a(f"v_add_u32 v{vT1}, s44, v{vT1}")
        a(f"v_mul_u32_u24 v{vT3}, 3072, v{vT1}")
        a(f"v_lshrrev_b32 v{vT0}, 2, v{vT2}")
        a(f"v_lshl_add_u32 v{vT3}, v{vT0}, 10, v{vT3}")
        a(f"v_and_b32 v{vT0}, 3, v{vT2}")
        a(f"v_lshl_add_u32 v{vT3}, v{vT0}, 4, v{vT3}")
        a(f"s_lshl_b32 s44, s{sCG}, 6")
        a(f"v_add_u32 v{vWq[j]}, s44, v{vT3}")
        a(f"v_mul_u32_u24 v{vT3}, 2752, v{vT1}")
        a(f"v_lshl_add_u32 v{vT3}, v{vT2}, 4, v{vT3}")
        a(f"s_lshl_b32 s44, s{sHC}, 1")
        a(f"v_add_u32 v{vW1[j]}, s44, v{vT3}")
    sXd, sWd = 42, 43
    a(f"s_lshl_b32 s{sXd}, s{sW}, 12")
    a(f"s_mul_i32 s{sWd}, s{sW}, 3072")

    def dma_stage(s):
        base = (s % NBUF) * STG
        for j in range(4):
            a(f"s_add_u32 m0, s{sXd}, {base + XO + j*1024}")
            a(f"s_mov_b32 s44, {j*8192 + s*128}")
            a(f"buffer_load_dwordx4 v{vXo if j%2==0 else vXo2}, {sr(sX,4)}, s44 offen lds")
        for j in range(3):
            a(f"s_add_u32 m0, s{sWd}, {base + WQO + j*1024}")
            a(f"s_mov_b32 s44, {s*64*3072}")
            a(f"buffer_load_dwordx4 v{vWq[j]}, {sr(sWQ,4)}, s44 offen lds")
        for j in range(3):
            a(f"s_add_u32 m0, s{sWd}, {base + W1O + j*1024}")
            a(f"s_mov_b32 s44, {s*64*2752}")
            a(f"buffer_load_dwordx4 v{vW1[j]}, {sr(sW1,4)}, s44 offen lds")

    for s in range(NBUF):
        dma_stage(s)
    vXa0 = [14, 15, 16, 17]
    vWa0 = 18
    vXa = [19, 20, 21, 22]; vWa = 23
    a(f"v_and_b32 v{vT0}, 31, v{vLane}")
    a(f"v_lshrrev_b32 v{vT1}, 5, v{vLane}")
    a(f"v_lshrrev_b32 v{vT2}, 1, v{vT0}")
    a(f"v_and_b32 v{vT2}, 7, v{vT2}")
    a(f"s_lshl_b32 s44, s{sMH}, 6")
    a(f"v_add_u32 v{vT0}, s44, v{vT0}")
    a(f"v_lshlrev_b32 v{vT0}, 7, v{vT0}")
    for kk in range(4):
        a(f"v_add_u32 v{vT3}, {2*kk}, v{vT1}")
        a(f"v_xor_b32 v{vT3}, v{vT3}, v{vT2}")
        a(f"v_lshl_add_u32 v{vXa0[kk]}, v{vT3}, 4, v{vT0}")
    a(f"v_lshrrev_b32 v{vT0}, 5, v{vLane}")
    a(f"v_lshlrev_b32 v{vT0}, 3, v{vT0}")
    a(f"v_bfe_u32 v{vT1}, v{vLane}, 2, 2")
    a(f"v_add_u32 v{vT0}, v{vT0}, v{vT1}")
    a(f"v_mul_u32_u24 v{vT0}, 192, v{vT0}")
    a(f"v_bfe_u32 v{vT1}, v{vLane}, 4, 1")
    a(f"v_lshl_add_u32 v{vT0}, v{vT1}, 5, v{vT0}")
    a(f"v_and_b32 v{vT1}, 3, v{vLane}")
    a(f"v_lshl_add_u32 v{vWa0}, v{vT1}, 3, v{vT0}")

    XF = [[24, 28], [32, 36]]
    WF = [[40, 44, 48], [52, 56, 60]]
    ACC = 64
    def acc(aa, t): return ACC + (aa * 3 + t) * 16

    a(f"s_cmp_eq_u32 s{sNH}, 1")
    a("s_cbranch_scc1 K1_NH1")

    def set_stage_addr(s):
        base = (s % NBUF) * STG
        for kk in range(4):
            a(f"v_add_u32 v{vXa[kk]}, {base + XO}, v{vXa0[kk]}")
        a(f"v_add_u32 v{vWa}, {base + WQO}, v{vWa0}")

    def mainloop(nh):
        tiles = [(0, 0, 'T'), (0, 64, 'T'), (12288, 0, 'T')] if nh == 0 else [(0, 128, 'N'), (12288, 64, 'T'), (12288, 128, 'T')]
        def reads(kk, b):
            for aa in range(2):
                a(f"ds_read_b128 {vr(XF[b][aa],4)}, v{vXa[kk]} offset:{aa*4096}")
            for t, (reg, col, _) in enumerate(tiles):
                for half in range(2):
                    a(f"ds_read_b64_tr_b16 {vr(WF[b][t]+2*half,2)}, v{vWa} offset:{reg + col + (16*kk + 4*half)*192}")
        a("s_waitcnt vmcnt(30)")
        a("s_barrier")
        set_stage_addr(0)
        reads(0, 0)
        steps = [(s, kk) for s in range(NST) for kk in range(4)]
        for i, (s, kk) in enumerate(steps):
            b = i % 2
            a("s_waitcnt lgkmcnt(0)")
            if kk == 3 and s < NST - 1:
                rem = min(NST - 1, s + 3) - (s + 1)
                a(f"s_waitcnt vmcnt({rem*10})")
                a("s_barrier")
                if s + 4 < NST:
                    dma_stage(s + 4)
                set_stage_addr(s + 1)
            if i + 1 < len(steps):
                reads(steps[i + 1][1], 1 - b)
            for aa in range(2):
                for t, (reg, col, ori) in enumerate(tiles):
                    cc = "0" if i == 0 else vr(acc(aa, t), 16)
                    if ori == 'T':
                        a(f"v_mfma_f32_32x32x16_bf16 {vr(acc(aa,t),16)}, {vr(WF[b][t],4)}, {vr(XF[b][aa],4)}, {cc}")
                    else:
                        a(f"v_mfma_f32_32x32x16_bf16 {vr(acc(aa,t),16)}, {vr(XF[b][aa],4)}, {vr(WF[b][t],4)}, {cc}")
        a("s_nop 15")
        vA, vB = 24, 25
        PK = 28
        vL32, vH = 26, 27
        a(f"v_and_b32 v{vL32}, 31, v{vLane}")
        a(f"v_lshrrev_b32 v{vH}, 5, v{vLane}")
        a(f"s_lshl_b32 s44, s{sRB}, 2")
        a(f"s_lshl_b32 s45, s{sMH}, 1")
        a("s_add_u32 s46, s44, s45")
        def qk_store(t, wsbase, scale):
            for aa in range(2):
                r0 = acc(aa, t)
                if scale:
                    for r in range(16):
                        a(f"v_mul_f32 v{r0+r}, {f32hex(0.25*LOG2E)}, v{r0+r}")
                for p in range(8):
                    a(f"v_cvt_pk_bf16_f32 v{PK+p}, v{r0+2*p}, v{r0+2*p+1}")
                a(f"s_lshl_b32 s47, s{sCG}, 17")
                a(f"s_add_u32 s48, s46, {aa}")
                a("s_lshl_b32 s48, s48, 10")
                a("s_add_u32 s47, s47, s48")
                a(f"s_add_u32 s47, s47, {wsbase}")
                a(f"v_lshlrev_b32 v{vA}, 4, v{vLane}")
                a(f"buffer_store_dwordx4 {vr(PK,4)}, v{vA}, {sr(sWS,4)}, s47 offen")
                a("s_add_u32 s47, s47, 65536")
                a(f"buffer_store_dwordx4 {vr(PK+4,4)}, v{vA}, {sr(sWS,4)}, s47 offen")
                a("s_nop 1")
        def v_store(t):
            a(f"v_lshrrev_b32 v{vA}, 4, v{vL32}")
            a(f"v_lshlrev_b32 v{vA}, 16, v{vA}")
            a(f"v_lshl_add_u32 v{vA}, v{vH}, 8, v{vA}")
            a(f"v_and_b32 v{vB}, 15, v{vL32}")
            a(f"v_lshl_add_u32 v{vA}, v{vB}, 4, v{vA}")
            for aa in range(2):
                r0 = acc(aa, t)
                for p in range(8):
                    a(f"v_cvt_pk_bf16_f32 v{PK+p}, v{r0+2*p}, v{r0+2*p+1}")
                a(f"s_lshl_b32 s47, s{sCG}, 17")
                a(f"s_add_u32 s48, s46, {aa}")
                a("s_lshl_b32 s48, s48, 10")
                a("s_add_u32 s47, s47, s48")
                a(f"s_add_u32 s47, s47, {WS_V}")
                a(f"buffer_store_dwordx4 {vr(PK,4)}, v{vA}, {sr(sWS,4)}, s47 offen")
                a(f"buffer_store_dwordx4 {vr(PK+4,4)}, v{vA}, {sr(sWS,4)}, s47 offen offset:512")
                a("s_nop 1")
        def h_store(t, hti):
            BI = 40
            BU = 48
            TMP = list(range(160, 192))
            a(f"s_add_u32 s47, s{sHC}, {32*hti}")
            a("s_lshl_b32 s47, s47, 1")
            a(f"v_lshlrev_b32 v{vA}, 3, v{vH}")
            for g in range(4):
                a(f"buffer_load_dwordx2 {vr(BI+2*g,2)}, v{vA}, {sr(sB1,4)}, s47 offen offset:{16*g}")
            a("s_waitcnt vmcnt(0)")
            for g in range(4):
                for d in range(2):
                    a(f"v_lshlrev_b32 v{BU+4*g+2*d}, 16, v{BI+2*g+d}")
                    a(f"v_and_b32 v{BU+4*g+2*d+1}, 0xffff0000, v{BI+2*g+d}")
            for aa in range(2):
                r0 = acc(aa, t)
                for hf in range(2):
                    mish_block(a, [r0 + 8*hf + i for i in range(8)], [BU + 8*hf + i for i in range(8)], TMP[:16])
                for p in range(8):
                    a(f"v_cvt_pk_bf16_f32 v{PK+p}, v{r0+2*p}, v{r0+2*p+1}")
                a(f"s_lshl_b32 s48, s{sRB}, 7")
                a(f"s_lshl_b32 s49, s{sMH}, 6")
                a("s_add_u32 s48, s48, s49")
                a(f"s_add_u32 s48, s48, {32*aa}")
                a(f"v_add_u32 v{vB}, s48, v{vL32}")
                a(f"v_mul_u32_u24 v{vB}, 2752, v{vB}")
                a(f"v_lshl_add_u32 v{vB}, v{vH}, 4, v{vB}")
                a(f"s_add_u32 s48, s47, {WS_ACT}")
                a(f"buffer_store_dwordx4 {vr(PK,4)}, v{vB}, {sr(sWS,4)}, s48 offen")
                a(f"buffer_store_dwordx4 {vr(PK+4,4)}, v{vB}, {sr(sWS,4)}, s48 offen offset:32")
                a("s_nop 1")
        if nh == 0:
            qk_store(0, WS_Q, True)
            qk_store(1, WS_K, False)
            h_store(2, 0)
        else:
            v_store(0)
            h_store(1, 1)
            a(f"s_cmp_ge_u32 s{sCG}, 11")
            a("s_cbranch_scc1 K1_END")
            h_store(2, 2)
    mainloop(0)
    a("s_branch K1_END")
    a.lab("K1_NH1")
    mainloop(1)
    a.lab("K1_END")
    a("s_endpgm")
    kernel_desc(a, name, 192)

def gen_k2(a):
    name = "attn_kernel"
    kernel_header(a, name)
    sWS = 16
    sHead, sQC, sW = 20, 21, 22
    sMaskLo = 24
    sFlag = 26
    KL = 0; VL = 65536; RED = 131072
    a("s_cmp_ge_u32 s2, 256")
    a("s_cbranch_scc1 K2_END")
    a("s_load_dwordx2 s[12:13], s[0:1], 80")
    a("s_and_b32 s44, s2, 7")
    a("s_lshr_b32 s45, s2, 3")
    a("s_lshl_b32 s44, s44, 2")
    a("s_and_b32 s46, s45, 3")
    a(f"s_add_u32 s{sHead}, s44, s46")
    a(f"s_lshr_b32 s{sQC}, s45, 2")
    vLane, vT0, vT1, vT2 = 1, 2, 3, 4
    a(f"v_and_b32 v{vLane}, 63, v0")
    a(f"v_lshrrev_b32 v{vT0}, 6, v0")
    a("s_nop 0")
    a(f"v_readfirstlane_b32 s{sW}, v{vT0}")
    a("s_waitcnt lgkmcnt(0)")
    srd(a, sWS, 12, WS_SIZE)
    vL16 = 5
    a(f"v_lshlrev_b32 v{vL16}, 4, v{vLane}")
    a(f"s_lshl_b32 s44, s{sHead}, 16")
    a(f"s_lshl_b32 s45, s{sW}, 13")
    a("s_add_u32 s46, s44, s45")
    for (wsb, ldsb) in ((WS_K, KL), (WS_V, VL)):
        for i in range(8):
            a(f"s_add_u32 m0, s45, {ldsb + i*1024}")
            a(f"s_add_u32 s47, s46, {wsb + i*1024}")
            a(f"buffer_load_dwordx4 v{vL16}, {sr(sWS,4)}, s47 offen lds")
    QF = 8
    a(f"s_lshl_b32 s47, s{sQC}, 3")
    a(f"s_add_u32 s47, s47, s{sW}")
    a("s_lshl_b32 s47, s47, 10")
    a("s_add_u32 s47, s47, s44")
    a(f"s_add_u32 s47, s47, {WS_Q}")
    a(f"buffer_load_dwordx4 {vr(QF,4)}, v{vL16}, {sr(sWS,4)}, s47 offen")
    MN = 16
    S = [32, 48]
    O = 64
    P = 80
    KF = [88, 92, 96]
    VF = [100, 104, 108, 112]
    vKa, vVa = 6, 7
    vRun = 12
    a(f"v_and_b32 v{vT0}, 31, v{vLane}")
    a(f"v_mov_b32 v{vT1}, 0")
    a(f"v_mov_b32 v{vT2}, 0x3f803f80")
    a(f"v_and_b32 v13, 27, v{vT0}")
    a("v_cmp_eq_u32 vcc, 16, v13")
    a("s_nop 1")
    a(f"v_cndmask_b32 v{vT1}, v{vT1}, v{vT2}, vcc")
    for b in VF:
        for r in range(4):
            a(f"v_mov_b32 v{b+r}, v{vT1}")
    a(f"v_cmp_gt_u32 vcc, 16, v{vT0}")
    a("s_nop 1")
    a(f"s_mov_b64 {sr(sMaskLo,2)}, vcc")
    a(f"v_mov_b32 v{vKa}, v{vL16}")
    a(f"v_lshrrev_b32 v{vT1}, 5, v{vLane}")
    a(f"v_lshlrev_b32 v{vT1}, 8, v{vT1}")
    a(f"v_and_b32 v{vT2}, 15, v{vLane}")
    a(f"v_lshl_add_u32 v{vVa}, v{vT2}, 4, v{vT1}")
    a(f"v_add_u32 v{vVa}, {VL}, v{vVa}")
    a("s_waitcnt vmcnt(9)")
    a("s_barrier")
    a(f"s_lshl_b32 s47, s{sW}, 13")
    a(f"v_add_u32 v{vT0}, s47, v{vL16}")
    a(f"v_mov_b32 v{vRun}, 0")
    for i in range(8):
        a(f"ds_read_b128 {vr(KF[i%2],4)}, v{vT0} offset:{i*1024}")
        a("s_waitcnt lgkmcnt(0)")
        a(f"v_mfma_f32_32x32x16_bf16 {vr(S[0],16)}, {vr(KF[i%2],4)}, {vr(KF[i%2],4)}, 0")
        a("s_nop 15")
        for r in range(0, 16, 2):
            a(f"v_max3_f32 v{vRun}, v{vRun}, v{S[0]+r}, v{S[0]+r+1}")
    for off in (0x041F, 0x081F, 0x101F, 0x201F, 0x401F):
        a(f"ds_swizzle_b32 v{vT1}, v{vRun} offset:{off}")
        a("s_waitcnt lgkmcnt(0)")
        a(f"v_max_f32 v{vRun}, v{vRun}, v{vT1}")
    a(f"v_mov_b32 v{vT1}, v{vRun}")
    a("s_nop 1")
    a(f"v_permlane32_swap_b32 v{vRun}, v{vT1}")
    a(f"v_max_f32 v{vRun}, v{vRun}, v{vT1}")
    a(f"s_lshl_b32 s47, s{sW}, 2")
    a(f"s_add_u32 s47, s47, {RED}")
    a(f"v_mov_b32 v{vT1}, s47")
    a(f"ds_write_b32 v{vT1}, v{vRun}")
    a("s_waitcnt vmcnt(0) lgkmcnt(0)")
    a("s_barrier")
    a(f"v_mov_b32 v{vT1}, {RED}")
    a(f"ds_read_b128 {vr(S[0],4)}, v{vT1}")
    a(f"ds_read_b128 {vr(S[0]+4,4)}, v{vT1} offset:16")
    for r in range(4):
        a(f"v_lshlrev_b32 v{S[1]+2*r}, 16, v{QF+r}")
        a(f"v_and_b32 v{S[1]+2*r+1}, 0xffff0000, v{QF+r}")
    a(f"v_mul_f32 v{vT0}, v{S[1]}, v{S[1]}")
    for r in range(1, 8):
        a(f"v_fma_f32 v{vT0}, v{S[1]+r}, v{S[1]+r}, v{vT0}")
    a(f"v_mov_b32 v{vT2}, v{vT0}")
    a("s_nop 1")
    a(f"v_permlane32_swap_b32 v{vT0}, v{vT2}")
    a(f"v_add_f32 v{vT0}, v{vT0}, v{vT2}")
    a("s_waitcnt lgkmcnt(0)")
    a(f"v_max3_f32 v{vRun}, v{S[0]}, v{S[0]+1}, v{S[0]+2}")
    a(f"v_max3_f32 v{vRun}, v{vRun}, v{S[0]+3}, v{S[0]+4}")
    a(f"v_max3_f32 v{vRun}, v{vRun}, v{S[0]+5}, v{S[0]+6}")
    a(f"v_max_f32 v{vRun}, v{vRun}, v{S[0]+7}")
    a(f"v_mul_f32 v{vT0}, v{vT0}, v{vRun}")
    a(f"v_sqrt_f32 v{vT0}, v{vT0}")
    a("s_nop 0")
    a(f"v_mul_f32 v{vT0}, {f32hex(-1.001)}, v{vT0}")
    for r in range(16):
        a(f"v_mov_b32 v{MN+r}, v{vT0}")
    a(f"s_mov_b32 s{sFlag}, 0")

    NT = 64
    a.lab("K2_PASS2")
    def rdK(t):
        a(f"ds_read_b128 {vr(KF[t%3],4)}, v{vKa} offset:{t*1024}")
    def rdV(t):
        a(f"s_mov_b64 exec, {sr(sMaskLo,2)}")
        for g in range(2):
            a(f"ds_read_b128 {vr(VF[(t%2)*2+g],4)}, v{vVa} offset:{(2*t+g)*512}")
        a("s_mov_b64 exec, -1")
    rdK(0); rdK(1); rdV(0)
    a("s_waitcnt lgkmcnt(0)")
    a(f"v_mfma_f32_32x32x16_bf16 {vr(S[0],16)}, {vr(KF[0],4)}, {vr(QF,4)}, {vr(MN,16)}")
    a("s_nop 7")
    for t in range(NT):
        sb = S[t % 2]
        if t + 2 < NT: rdK(t + 2)
        if t + 1 < NT: rdV(t + 1)
        nout = (1 if t + 2 < NT else 0) + (2 if t + 1 < NT else 0)
        a(f"s_waitcnt lgkmcnt({nout})")
        if t + 1 < NT:
            a(f"v_mfma_f32_32x32x16_bf16 {vr(S[(t+1)%2],16)}, {vr(KF[(t+1)%3],4)}, {vr(QF,4)}, {vr(MN,16)}")
        for g in range(2):
            for r in range(8):
                a(f"v_exp_f32 v{sb+8*g+r}, v{sb+8*g+r}")
            for p in range(4):
                a(f"v_cvt_pk_bf16_f32 v{P+4*g+p}, v{sb+8*g+2*p}, v{sb+8*g+2*p+1}")
            a("s_nop 1")
            cc = "0" if (t == 0 and g == 0) else vr(O, 16)
            a(f"v_mfma_f32_32x32x16_bf16 {vr(O,16)}, {vr(VF[(t%2)*2+g],4)}, {vr(P+4*g,4)}, {cc}")
    a("s_nop 15")
    a(f"s_cmp_eq_u32 s{sFlag}, 1")
    a("s_cbranch_scc1 K2_EPI")
    a(f"v_cmp_nle_f32 vcc, {f32hex(2.0**-40)}, v{O+8}")
    a("s_nop 4")
    a("s_cmp_eq_u64 vcc, 0")
    a("s_cbranch_scc1 K2_EPI")
    a(f"v_mov_b32 v{vRun}, 0xff800000")
    a("s_mov_b32 s47, 0")
    a(f"v_mov_b32 v{vT0}, v{vKa}")
    a.lab("K2_P1LOOP")
    a(f"ds_read_b128 {vr(KF[0],4)}, v{vT0}")
    a("s_waitcnt lgkmcnt(0)")
    a(f"v_mfma_f32_32x32x16_bf16 {vr(S[0],16)}, {vr(KF[0],4)}, {vr(QF,4)}, 0")
    a("s_nop 15")
    for r in range(0, 16, 2):
        a(f"v_max3_f32 v{vRun}, v{vRun}, v{S[0]+r}, v{S[0]+r+1}")
    a(f"v_add_u32 v{vT0}, 1024, v{vT0}")
    a("s_add_u32 s47, s47, 1")
    a("s_cmp_lt_u32 s47, 64")
    a("s_cbranch_scc1 K2_P1LOOP")
    a(f"v_mov_b32 v{vT1}, v{vRun}")
    a("s_nop 1")
    a(f"v_permlane32_swap_b32 v{vRun}, v{vT1}")
    a(f"v_max_f32 v{vRun}, v{vRun}, v{vT1}")
    a(f"v_sub_f32 v{vRun}, 0, v{vRun}")
    for r in range(16):
        a(f"v_mov_b32 v{MN+r}, v{vRun}")
    a(f"s_mov_b32 s{sFlag}, 1")
    a("s_branch K2_PASS2")
    a.lab("K2_EPI")
    a(f"v_rcp_f32 v{vT0}, v{O+8}")
    a("s_nop 0")
    for r in range(8):
        a(f"v_mul_f32 v{O+r}, v{O+r}, v{vT0}")
    for p in range(4):
        a(f"v_cvt_pk_bf16_f32 v{P+p}, v{O+2*p}, v{O+2*p+1}")
    a(f"s_lshl_b32 s47, s{sQC}, 8")
    a(f"s_lshl_b32 s48, s{sW}, 5")
    a("s_add_u32 s47, s47, s48")
    a(f"v_and_b32 v{vT0}, 31, v{vLane}")
    a(f"v_add_u32 v{vT0}, s47, v{vT0}")
    a(f"v_lshlrev_b32 v{vT0}, 10, v{vT0}")
    a(f"v_lshrrev_b32 v{vT1}, 5, v{vLane}")
    a(f"v_lshl_add_u32 v{vT0}, v{vT1}, 4, v{vT0}")
    a(f"s_lshl_b32 s47, s{sHead}, 5")
    a(f"s_add_u32 s47, s47, {WS_O}")
    a(f"buffer_store_dwordx4 {vr(P,4)}, v{vT0}, {sr(sWS,4)}, s47 offen")
    a.lab("K2_END")
    a("s_endpgm")
    kernel_desc(a, name, 120)

def gen_k3(a):
    name = "out_kernel"
    kernel_header(a, name)
    sWS, sWO, sW2, sX, sGW, sOut = 16, 20, 24, 28, 32, 36
    sRB, sCB, sW, sWM, sWN = 40, 41, 42, 43, 49
    STG = 32768; AO = 0; BO = 16384; NBUF = 4
    stages = [(0, 128 * i, 128) for i in range(4)] + [(1, 128 * i, 128) for i in range(10)] + [(1, 1280, 96)]
    NST = len(stages)
    a("s_cmp_ge_u32 s2, 256")
    a("s_cbranch_scc1 K3_END")
    a("s_load_dwordx2 s[4:5], s[0:1], 0")
    a("s_load_dwordx2 s[6:7], s[0:1], 16")
    a("s_load_dwordx4 s[8:11], s[0:1], 48")
    a("s_load_dwordx2 s[12:13], s[0:1], 64")
    a("s_load_dwordx2 s[14:15], s[0:1], 80")
    a("s_and_b32 s44, s2, 7")
    a("s_lshr_b32 s45, s2, 3")
    a("s_lshl_b32 s44, s44, 2")
    a("s_and_b32 s46, s45, 3")
    a(f"s_add_u32 s{sRB}, s44, s46")
    a(f"s_lshr_b32 s{sCB}, s45, 2")
    vLane, vT0, vT1, vT2, vT3 = 1, 2, 3, 4, 5
    a(f"v_and_b32 v{vLane}, 63, v0")
    a(f"v_lshrrev_b32 v{vT0}, 6, v0")
    a("s_nop 0")
    a(f"v_readfirstlane_b32 s{sW}, v{vT0}")
    a("s_waitcnt lgkmcnt(0)")
    srd(a, sWS, 14, WS_SIZE)
    srd(a, sWO, 6, 512 * 512 * 2)
    srd(a, sW2, 8, 1376 * 512 * 2)
    srd(a, sX, 4, 2048 * 512 * 2)
    srd(a, sGW, 10, 512 * 2)
    srd(a, sOut, 12, 2048 * 512 * 2)
    a(f"s_lshr_b32 s{sWM}, s{sW}, 1")
    a(f"s_and_b32 s{sWN}, s{sW}, 1")
    vAo = [6, 7, 8, 9]
    vAa = [10, 11, 12, 13]
    for j in range(4):
        a(f"v_lshrrev_b32 v{vT0}, 4, v{vLane}")
        a(f"v_add_u32 v{vT0}, {4*j}, v{vT0}")
        a(f"v_and_b32 v{vT1}, 15, v{vLane}")
        a(f"v_xor_b32 v{vT1}, v{vT1}, v{vT0}")
        a(f"s_lshl_b32 s44, s{sRB}, 6")
        a(f"s_lshl_b32 s45, s{sW}, 4")
        a("s_add_u32 s44, s44, s45")
        a(f"v_add_u32 v{vT0}, s44, v{vT0}")
        a(f"v_lshlrev_b32 v{vT2}, 10, v{vT0}")
        a(f"v_lshl_add_u32 v{vAo[j]}, v{vT1}, 4, v{vT2}")
        a(f"v_mul_u32_u24 v{vT2}, 2752, v{vT0}")
        a(f"v_lshl_add_u32 v{vAa[j]}, v{vT1}, 4, v{vT2}")
    vBo = 14
    a(f"v_lshrrev_b32 v{vT0}, 3, v{vLane}")
    a(f"v_and_b32 v{vT1}, 7, v{vLane}")
    a(f"v_bfe_u32 v{vT2}, v{vT0}, 1, 1")
    a(f"v_lshlrev_b32 v{vT2}, 2, v{vT2}")
    a(f"v_xor_b32 v{vT1}, v{vT1}, v{vT2}")
    a(f"s_lshl_b32 s44, s{sW}, 5")
    a(f"v_add_u32 v{vT0}, s44, v{vT0}")
    a(f"v_lshlrev_b32 v{vT0}, 10, v{vT0}")
    a(f"v_lshl_add_u32 v{vT0}, v{vT1}, 4, v{vT0}")
    a(f"s_lshl_b32 s44, s{sCB}, 7")
    a(f"v_add_u32 v{vBo}, s44, v{vT0}")
    sD = 50
    a(f"s_lshl_b32 s{sD}, s{sW}, 12")
    def dma_stage(si):
        kind, k0, nk = stages[si]
        base = (si % NBUF) * STG
        for j in range(4):
            a(f"s_add_u32 m0, s{sD}, {base + AO + j*1024}")
            a(f"s_mov_b32 s44, {(WS_O if kind == 0 else WS_ACT) + k0*2}")
            a(f"buffer_load_dwordx4 v{(vAo if kind == 0 else vAa)[j]}, {sr(sWS,4)}, s44 offen lds")
        for j in range(4):
            a(f"s_add_u32 m0, s{sD}, {base + BO + j*1024}")
            a(f"s_mov_b32 s44, {(k0 + 8*j)*1024}")
            a(f"buffer_load_dwordx4 v{vBo}, {sr(sWO if kind == 0 else sW2,4)}, s44 offen lds")
    for s in range(NBUF):
        dma_stage(s)
    vGx = 15; GA = 96
    a(f"v_and_b32 v{vT0}, 31, v{vLane}")
    a(f"s_lshl_b32 s44, s{sRB}, 6")
    a(f"s_lshl_b32 s45, s{sWM}, 5")
    a("s_add_u32 s44, s44, s45")
    a(f"v_add_u32 v{vT0}, s44, v{vT0}")
    vTok = 16
    a(f"v_mov_b32 v{vTok}, v{vT0}")
    a(f"v_lshlrev_b32 v{vT0}, 10, v{vT0}")
    a(f"v_lshrrev_b32 v{vT1}, 5, v{vLane}")
    a(f"v_lshlrev_b32 v{vT1}, 9, v{vT1}")
    a(f"v_add_u32 v{vGx}, v{vT0}, v{vT1}")
    vG = 17
    a(f"v_mov_b32 v{vG}, 0")
    for c in range(8):
        for i in range(4):
            a(f"buffer_load_dwordx4 {vr(GA+8*i,4)}, v{vGx}, {sr(sX,4)}, 0 offen offset:{(4*c+i)*16}")
            a(f"buffer_load_dwordx4 {vr(GA+8*i+4,4)}, v{vT1}, {sr(sGW,4)}, 0 offen offset:{(4*c+i)*16}")
        a("s_waitcnt vmcnt(0)")
        for i in range(4):
            for r in range(4):
                xx = GA + 8*i + r; ww = GA + 8*i + 4 + r
                a(f"v_lshlrev_b32 v{vT2}, 16, v{xx}")
                a(f"v_lshlrev_b32 v{vT3}, 16, v{ww}")
                a(f"v_fma_f32 v{vG}, v{vT2}, v{vT3}, v{vG}")
                a(f"v_and_b32 v{vT2}, 0xffff0000, v{xx}")
                a(f"v_and_b32 v{vT3}, 0xffff0000, v{ww}")
                a(f"v_fma_f32 v{vG}, v{vT2}, v{vT3}, v{vG}")
    a(f"v_mov_b32 v{vT2}, v{vG}")
    a("s_nop 1")
    a(f"v_permlane32_swap_b32 v{vG}, v{vT2}")
    a(f"v_add_f32 v{vG}, v{vG}, v{vT2}")
    a(f"v_mul_f32 v{vG}, {f32hex(-LOG2E)}, v{vG}")
    a(f"v_exp_f32 v{vG}, v{vG}")
    a("s_nop 0")
    a(f"v_add_f32 v{vG}, 1.0, v{vG}")
    a(f"v_rcp_f32 v{vG}, v{vG}")
    vAa0 = [18 + i for i in range(8)]
    vBa0 = 26
    vAd = [27 + i for i in range(8)]
    vBd = 35
    a(f"v_and_b32 v{vT0}, 31, v{vLane}")
    a(f"v_lshrrev_b32 v{vT1}, 5, v{vLane}")
    a(f"v_and_b32 v{vT2}, 15, v{vT0}")
    a(f"s_lshl_b32 s44, s{sWM}, 5")
    a(f"v_add_u32 v{vT0}, s44, v{vT0}")
    a(f"v_lshlrev_b32 v{vT0}, 8, v{vT0}")
    for kk in range(8):
        a(f"v_add_u32 v{vT3}, {2*kk}, v{vT1}")
        a(f"v_xor_b32 v{vT3}, v{vT3}, v{vT2}")
        a(f"v_lshl_add_u32 v{vAa0[kk]}, v{vT3}, 4, v{vT0}")
    a(f"v_lshrrev_b32 v{vT0}, 5, v{vLane}")
    a(f"v_lshlrev_b32 v{vT0}, 2, v{vT0}")
    a(f"v_bfe_u32 v{vT1}, v{vLane}, 2, 2")
    a(f"v_add_u32 v{vT0}, v{vT0}, v{vT1}")
    a(f"v_lshlrev_b32 v{vT0}, 7, v{vT0}")
    a(f"v_bfe_u32 v{vT2}, v{vLane}, 3, 1")
    a(f"v_xor_b32 v{vT2}, s{sWN}, v{vT2}")
    a(f"v_lshl_add_u32 v{vT0}, v{vT2}, 6, v{vT0}")
    a(f"v_bfe_u32 v{vT1}, v{vLane}, 4, 1")
    a(f"v_lshl_add_u32 v{vT0}, v{vT1}, 5, v{vT0}")
    a(f"v_and_b32 v{vT1}, 3, v{vLane}")
    a(f"v_lshl_add_u32 v{vBa0}, v{vT1}, 3, v{vT0}")
    AF = [36, 40]; BF = [44, 48]
    ACC = [64, 80]
    def set_stage_addr(si):
        base = (si % NBUF) * STG
        for kk in range(8):
            a(f"v_add_u32 v{vAd[kk]}, {base + AO}, v{vAa0[kk]}")
        a(f"v_add_u32 v{vBd}, {base + BO}, v{vBa0}")
    steps = []
    for si, (kind, k0, nk) in enumerate(stages):
        for kk in range(nk // 16):
            steps.append((si, kk, kk == nk // 16 - 1))
    def reads(i, b):
        si, kk, _ = steps[i]
        a(f"ds_read_b128 {vr(AF[b],4)}, v{vAd[kk]}")
        for half in range(2):
            a(f"ds_read_b64_tr_b16 {vr(BF[b]+2*half,2)}, v{vBd} offset:{(16*kk + 8*half)*128}")
    a("s_waitcnt vmcnt(24)")
    a("s_barrier")
    set_stage_addr(0)
    reads(0, 0)
    first = [True, True]
    for i, (si, kk, last) in enumerate(steps):
        b = i % 2
        a("s_waitcnt lgkmcnt(0)")
        if last and si < NST - 1:
            rem = min(NST - 1, si + 3) - (si + 1)
            a(f"s_waitcnt vmcnt({rem*8})")
            a("s_barrier")
            if si + 4 < NST:
                dma_stage(si + 4)
            set_stage_addr(si + 1)
        if i + 1 < len(steps):
            reads(i + 1, 1 - b)
        kind = stages[si][0]
        cc = "0" if first[kind] else vr(ACC[kind], 16)
        first[kind] = False
        a(f"v_mfma_f32_32x32x16_bf16 {vr(ACC[kind],16)}, {vr(BF[b],4)}, {vr(AF[b],4)}, {cc}")
    a("s_nop 15")
    for r in range(16):
        a(f"v_sub_f32 v{ACC[0]+r}, v{ACC[0]+r}, v{ACC[1]+r}")
    for r in range(16):
        a(f"v_fma_f32 v{ACC[0]+r}, v{vG}, v{ACC[0]+r}, v{ACC[1]+r}")
    for p in range(8):
        a(f"v_cvt_pk_bf16_f32 v{ACC[1]+p}, v{ACC[0]+2*p}, v{ACC[0]+2*p+1}")
    a(f"v_lshlrev_b32 v{vT0}, 10, v{vTok}")
    a(f"v_lshrrev_b32 v{vT1}, 5, v{vLane}")
    a(f"v_lshl_add_u32 v{vT0}, v{vT1}, 3, v{vT0}")
    a(f"s_lshl_b32 s44, s{sCB}, 7")
    a(f"s_lshl_b32 s45, s{sWN}, 6")
    a("s_add_u32 s44, s44, s45")
    for g in range(4):
        a(f"buffer_store_dwordx2 {vr(ACC[1]+2*g,2)}, v{vT0}, {sr(sOut,4)}, s44 offen offset:{16*g}")
    a.lab("K3_END")
    a("s_endpgm")
    kernel_desc(a, name, 136)

def main():
    a = A()
    hdr = open(f"cdna_kernels/{NAME}.s.ref").read().splitlines()
    for ln in hdr:
        if ln.startswith("; @launch") or ln.startswith("; Override") or ln.startswith("; grid=ceil"):
            continue
        if not ln.startswith(";"):
            break
        a.raw(ln)
    a.raw("; @launch kernel=proj_kernel grid=(256,1,1) block=(256,1,1) lds=163840")
    a.raw("; @launch kernel=attn_kernel grid=(256,1,1) block=(512,1,1) lds=131200")
    a.raw("; @launch kernel=out_kernel grid=(256,1,1) block=(256,1,1) lds=131072")
    a.raw('.amdgcn_target "amdgcn-amd-amdhsa--gfx950"')
    gen_k1(a)
    gen_k2(a)
    gen_k3(a)
    out = sys.argv[1] if len(sys.argv) > 1 else f"cdna_kernels/{NAME}.s"
    open(out, "w").write("\n".join(a.l) + "\n")
main()
```

```python
import sys
NAME = "gated_mix__softmax_full_mha__dense_activation_mish__prompt"

WS_Q = 0
WS_K = 2 << 20
WS_V = 4 << 20
WS_ACT = 6 << 20
WS_O = 12 << 20
WS_G = 14 << 20
WS_B = 16 << 20
WS_W2T = 20 << 20
WS_SIZE = 268435456
LOG2E = 1.4426950408889634

import struct
def f32hex(x):
    return "0x%08x" % struct.unpack("<I", struct.pack("<f", x))[0]

class A:
    def __init__(self):
        self.l = []
    def __call__(self, s):
        self.l.append("    " + s)
    def lab(self, s):
        self.l.append(s + ":")
    def raw(self, s):
        self.l.append(s)
    def c(self, s):
        self.l.append("    ; " + s)

def vr(b, n=1):
    return f"v{b}" if n == 1 else f"v[{b}:{b+n-1}]"
def sr(b, n=1):
    return f"s{b}" if n == 1 else f"s[{b}:{b+n-1}]"

def srd(a, dst, ptr, size):
    a(f"s_mov_b32 s{dst}, s{ptr}")
    a(f"s_and_b32 s{dst+1}, s{ptr+1}, 0xffff")
    a(f"s_mov_b32 s{dst+2}, {size}")
    a(f"s_mov_b32 s{dst+3}, 0x00020000")

def kernel_header(a, name):
    a.raw(".text")
    a.raw(f".globl {name}")
    a.raw(".p2align 8")
    a.raw(f".type {name},@function")
    a.lab(name)

def kernel_desc(a, name, vgpr, sgpr=102, accum=None):
    if accum is None:
        accum = (vgpr + 3) // 4 * 4
    a.raw('.section .rodata,"a"')
    a.raw(".p2align 6")
    a.raw(f".amdhsa_kernel {name}")
    a.raw(f"  .amdhsa_next_free_vgpr {vgpr}")
    a.raw(f"  .amdhsa_next_free_sgpr {sgpr}")
    a.raw(f"  .amdhsa_accum_offset {accum}")
    a.raw("  .amdhsa_group_segment_fixed_size 0")
    a.raw("  .amdhsa_kernarg_size 88")
    a.raw("  .amdhsa_user_sgpr_count 2")
    a.raw("  .amdhsa_user_sgpr_kernarg_segment_ptr 1")
    a.raw("  .amdhsa_system_sgpr_workgroup_id_x 1")
    a.raw(".end_amdhsa_kernel")

import os
STAMP = int(os.environ.get("STAMP", "0"))
WS_DBG = 24 << 20
class Stamps:
    def __init__(self, a, kid):
        self.a = a; self.n = 0; self.kid = kid
    def __call__(self):
        if not STAMP: return
        if self.n == 0: self.a("s_memrealtime s[96:97]")
        self.a(f"s_memtime s[{70+2*self.n}:{71+2*self.n}]")
        self.n += 1
    def dump(self, sWS, sWave, nwaves):
        if not STAMP: return
        a = self.a
        a("s_memrealtime s[98:99]")
        a("s_waitcnt lgkmcnt(0)")
        a(f"s_mul_i32 s68, s2, {nwaves}")
        a(f"s_add_u32 s68, s68, s{sWave}")
        a("s_lshl_b32 s68, s68, 7")
        a(f"s_add_u32 s68, s68, {WS_DBG + self.kid * (1 << 20)}")
        a("v_mov_b32 v2, 0")
        for i in range(self.n):
            a(f"v_mov_b32 v3, s{70+2*i}")
            a(f"buffer_store_dword v3, v2, {sr(sWS,4)}, s68 offen offset:{4*i}")
        for i, sg in ((30, 96), (31, 98)):
            a(f"v_mov_b32 v3, s{sg}")
            a(f"buffer_store_dword v3, v2, {sr(sWS,4)}, s68 offen offset:{4*i}")

def mish_block(a, regs, bias, tmp):
    n = len(regs)
    t = tmp[:n]; u = tmp[n:2*n]
    for i in range(n): a(f"v_add_f32 v{regs[i]}, v{regs[i]}, v{bias[i]}")
    for i in range(n): a(f"v_mul_f32 v{t[i]}, {f32hex(LOG2E)}, v{regs[i]}")
    for i in range(n): a(f"v_min_f32 v{t[i]}, {f32hex(30.0)}, v{t[i]}")
    for i in range(n): a(f"v_exp_f32 v{t[i]}, v{t[i]}")
    a("s_nop 0")
    for i in range(n): a(f"v_add_f32 v{u[i]}, 2.0, v{t[i]}")
    for i in range(n): a(f"v_mul_f32 v{u[i]}, v{u[i]}, v{t[i]}")
    for i in range(n): a(f"v_add_f32 v{t[i]}, 2.0, v{u[i]}")
    for i in range(n): a(f"v_rcp_f32 v{t[i]}, v{t[i]}")
    a("s_nop 0")
    for i in range(n): a(f"v_mul_f32 v{u[i]}, v{u[i]}, v{t[i]}")
    for i in range(n): a(f"v_mul_f32 v{regs[i]}, v{regs[i]}, v{u[i]}")


def gen_k1(a):
    name = "proj_kernel"
    kernel_header(a, name)
    STG = 40960; XO = 0; WQO = 16384; W1O = 28672; NBUF = 3; NST = 8
    sX, sWQ, sW1, sB1, sWS, sW2, sGW = 16, 20, 24, 28, 32, 52, 56
    sRB, sCG, sW, sHC, sRT, sNH = 36, 37, 38, 39, 40, 41
    a("s_cmp_ge_u32 s2, 256")
    a("s_cbranch_scc1 K1_END")
    a("s_load_dwordx4 s[4:7], s[0:1], 0")
    a("s_load_dwordx4 s[8:11], s[0:1], 32")
    a("s_load_dwordx2 s[12:13], s[0:1], 80")
    a("s_load_dwordx4 s[60:63], s[0:1], 48")
    a("s_and_b32 s44, s2, 7")
    a("s_lshr_b32 s45, s2, 3")
    a("s_and_b32 s46, s44, 3")
    a("s_lshl_b32 s46, s46, 2")
    a("s_and_b32 s47, s45, 3")
    a(f"s_add_u32 s{sRB}, s46, s47")
    a("s_lshr_b32 s46, s44, 2")
    a("s_lshl_b32 s46, s46, 3")
    a("s_lshr_b32 s47, s45, 2")
    a(f"s_add_u32 s{sCG}, s46, s47")
    a(f"s_mul_i32 s46, s{sCG}, 96")
    a(f"s_lshl_b32 s47, s{sCG}, 6")
    a("s_add_u32 s47, s47, 352")
    a(f"s_cmp_lt_u32 s{sCG}, 11")
    a(f"s_cselect_b32 s{sHC}, s46, s47")
    vLane, vT0, vT1, vT2, vT3 = 1, 2, 3, 4, 5
    a(f"v_and_b32 v{vLane}, 63, v0")
    a(f"v_lshrrev_b32 v{vT0}, 6, v0")
    a("s_nop 0")
    a(f"v_readfirstlane_b32 s{sW}, v{vT0}")
    a("s_waitcnt lgkmcnt(0)")
    srd(a, sX, 4, 2048 * 512 * 2)
    srd(a, sWQ, 6, 512 * 1536 * 2)
    srd(a, sW1, 8, 512 * 1376 * 2)
    srd(a, sB1, 10, 1376 * 2)
    srd(a, sWS, 12, WS_SIZE)
    srd(a, sW2, 60, 1376 * 512 * 2)
    srd(a, sGW, 62, 512 * 2)
    st = Stamps(a, 0); st()
    a(f"s_cmp_ge_u32 s{sW}, 8")
    a("s_cbranch_scc1 K1_LOADER")
    a(f"s_lshr_b32 s{sRT}, s{sW}, 1")
    a(f"s_and_b32 s{sNH}, s{sW}, 1")
    vXa0 = [14, 15, 16, 17]
    vWa0 = 18
    vXa = [19, 20, 21, 22]; vWa = 23
    a(f"v_and_b32 v{vT0}, 31, v{vLane}")
    a(f"v_lshrrev_b32 v{vT1}, 5, v{vLane}")
    a(f"v_lshrrev_b32 v{vT2}, 1, v{vT0}")
    a(f"v_and_b32 v{vT2}, 7, v{vT2}")
    a(f"s_lshl_b32 s44, s{sRT}, 5")
    a(f"v_add_u32 v{vT0}, s44, v{vT0}")
    a(f"v_lshlrev_b32 v{vT0}, 7, v{vT0}")
    for kk in range(4):
        a(f"v_add_u32 v{vT3}, {2*kk}, v{vT1}")
        a(f"v_xor_b32 v{vT3}, v{vT3}, v{vT2}")
        a(f"v_lshl_add_u32 v{vXa0[kk]}, v{vT3}, 4, v{vT0}")
    a(f"v_lshrrev_b32 v{vT0}, 5, v{vLane}")
    a(f"v_lshlrev_b32 v{vT0}, 3, v{vT0}")
    a(f"v_bfe_u32 v{vT1}, v{vLane}, 2, 2")
    a(f"v_add_u32 v{vT0}, v{vT0}, v{vT1}")
    a(f"v_mul_u32_u24 v{vT0}, 192, v{vT0}")
    a(f"v_bfe_u32 v{vT1}, v{vLane}, 4, 1")
    a(f"v_lshl_add_u32 v{vT0}, v{vT1}, 5, v{vT0}")
    a(f"v_and_b32 v{vT1}, 3, v{vLane}")
    a(f"v_lshl_add_u32 v{vWa0}, v{vT1}, 3, v{vT0}")

    XF = [24, 28]
    WF = [[32, 36, 40], [44, 48, 52]]
    ACC = 64
    def acc(t): return ACC + t * 16
    a(f"s_cmp_eq_u32 s{sNH}, 1")
    a("s_cbranch_scc1 K1_NH1")

    def set_stage_addr(s):
        base = (s % NBUF) * STG
        for kk in range(4):
            a(f"v_add_u32 v{vXa[kk]}, {base + XO}, v{vXa0[kk]}")
        a(f"v_add_u32 v{vWa}, {base + WQO}, v{vWa0}")

    def mainloop(nh):
        tiles = [(0, 0, 'T'), (0, 64, 'T'), (12288, 0, 'T')] if nh == 0 else [(0, 128, 'N'), (12288, 64, 'T'), (12288, 128, 'T')]
        def reads(kk, b):
            a(f"ds_read_b128 {vr(XF[b],4)}, v{vXa[kk]}")
            for t, (reg, col, _) in enumerate(tiles):
                for half in range(2):
                    a(f"ds_read_b64_tr_b16 {vr(WF[b][t]+2*half,2)}, v{vWa} offset:{reg + col + (16*kk + 4*half)*192}")
        st.n = 1
        a("s_barrier")
        st()
        set_stage_addr(0)
        reads(0, 0)
        steps = [(s, kk) for s in range(NST) for kk in range(4)]
        for i, (s, kk) in enumerate(steps):
            b = i % 2
            a("s_waitcnt lgkmcnt(0)")
            if kk == 3 and s < NST - 1:
                a("s_barrier")
                set_stage_addr(s + 1)
            if i + 1 < len(steps):
                reads(steps[i + 1][1], 1 - b)
            for t, (reg, col, ori) in enumerate(tiles):
                cc = "0" if i == 0 else vr(acc(t), 16)
                if ori == 'T':
                    a(f"v_mfma_f32_32x32x16_bf16 {vr(acc(t),16)}, {vr(WF[b][t],4)}, {vr(XF[b],4)}, {cc}")
                else:
                    a(f"v_mfma_f32_32x32x16_bf16 {vr(acc(t),16)}, {vr(XF[b],4)}, {vr(WF[b][t],4)}, {cc}")
        st()
        vA, vB = 24, 25
        PK = 28
        vL32, vH = 26, 27
        BI = 40; BU = 48; TMP = list(range(112, 128))
        a(f"v_and_b32 v{vL32}, 31, v{vLane}")
        a(f"v_lshrrev_b32 v{vH}, 5, v{vLane}")
        a(f"s_lshl_b32 s44, s{sRB}, 2")
        a(f"s_add_u32 s46, s44, s{sRT}")
        a(f"v_lshlrev_b32 v{vA}, 4, v{vLane}")
        a("s_nop 7")
        def qk_store(t, wsbase, scale):
            r0 = acc(t)
            if scale:
                for r in range(16):
                    a(f"v_mul_f32 v{r0+r}, {f32hex(0.25*LOG2E)}, v{r0+r}")
            for p in range(8):
                a(f"v_cvt_pk_bf16_f32 v{PK+p}, v{r0+2*p}, v{r0+2*p+1}")
            a(f"s_lshl_b32 s47, s{sCG}, 17")
            a("s_lshl_b32 s48, s46, 10")
            a("s_add_u32 s47, s47, s48")
            a(f"s_add_u32 s47, s47, {wsbase}")
            a(f"buffer_store_dwordx4 {vr(PK,4)}, v{vA}, {sr(sWS,4)}, s47 offen")
            a("s_add_u32 s47, s47, 65536")
            a(f"buffer_store_dwordx4 {vr(PK+4,4)}, v{vA}, {sr(sWS,4)}, s47 offen")
            a("s_nop 1")
        def v_store(t):
            a(f"v_lshrrev_b32 v{vB}, 4, v{vL32}")
            a(f"v_lshlrev_b32 v{vB}, 16, v{vB}")
            a(f"v_lshl_add_u32 v{vB}, v{vH}, 8, v{vB}")
            a(f"v_and_b32 v{vT0}, 15, v{vL32}")
            a(f"v_lshl_add_u32 v{vB}, v{vT0}, 4, v{vB}")
            r0 = acc(t)
            for p in range(8):
                a(f"v_cvt_pk_bf16_f32 v{PK+p}, v{r0+2*p}, v{r0+2*p+1}")
            a(f"s_lshl_b32 s47, s{sCG}, 17")
            a("s_lshl_b32 s48, s46, 10")
            a("s_add_u32 s47, s47, s48")
            a(f"s_add_u32 s47, s47, {WS_V}")
            a(f"buffer_store_dwordx4 {vr(PK,4)}, v{vB}, {sr(sWS,4)}, s47 offen")
            a(f"buffer_store_dwordx4 {vr(PK+4,4)}, v{vB}, {sr(sWS,4)}, s47 offen offset:512")
            a("s_nop 1")
        def h_store(t, hti):
            a(f"s_add_u32 s47, s{sHC}, {32*hti}")
            a("s_lshl_b32 s49, s47, 1")
            a(f"v_lshlrev_b32 v{vT0}, 3, v{vH}")
            for g in range(4):
                a(f"buffer_load_dwordx2 {vr(BI+2*g,2)}, v{vT0}, {sr(sB1,4)}, s49 offen offset:{16*g}")
            a("s_waitcnt vmcnt(0)")
            for g in range(4):
                for d in range(2):
                    a(f"v_lshlrev_b32 v{BU+4*g+2*d}, 16, v{BI+2*g+d}")
                    a(f"v_and_b32 v{BU+4*g+2*d+1}, 0xffff0000, v{BI+2*g+d}")
            r0 = acc(t)
            for hf in range(2):
                mish_block(a, [r0 + 8*hf + i for i in range(8)], [BU + 8*hf + i for i in range(8)], TMP)
            for p in range(8):
                a(f"v_cvt_pk_bf16_f32 v{PK+p}, v{r0+2*p}, v{r0+2*p+1}")
            a("s_mul_i32 s48, s46, 86")
            a("s_lshr_b32 s49, s47, 4")
            a("s_add_u32 s48, s48, s49")
            a("s_lshl_b32 s48, s48, 10")
            a(f"s_add_u32 s48, s48, {WS_ACT}")
            a(f"buffer_store_dwordx4 {vr(PK,4)}, v{vA}, {sr(sWS,4)}, s48 offen")
            a(f"buffer_store_dwordx4 {vr(PK+4,4)}, v{vA}, {sr(sWS,4)}, s48 offen offset:1024")
            a("s_nop 1")
        if nh == 0:
            qk_store(0, WS_Q, True)
            qk_store(1, WS_K, False)
            h_store(2, 0)
        else:
            v_store(0)
            h_store(1, 1)
            a(f"s_cmp_ge_u32 s{sCG}, 11")
            a(f"s_cbranch_scc1 K1_SKIP2")
            h_store(2, 2)
            a.lab("K1_SKIP2")
        st()
        if STAMP: a("s_waitcnt vmcnt(0)")
        st()
        st.dump(sWS, sW, 12)
        a("s_endpgm")
    mainloop(0)
    a.lab("K1_NH1")
    mainloop(1)

    a.lab("K1_LOADER")
    sL = 42
    a(f"s_sub_u32 s{sL}, s{sW}, 8")
    vXo = 6; vWq = [7, 8, 9]; vW1 = [10, 11, 12]; vXo2 = 13
    a(f"v_lshrrev_b32 v{vT0}, 3, v{vLane}")
    a(f"v_and_b32 v{vT1}, 7, v{vLane}")
    a(f"v_lshrrev_b32 v{vT2}, 1, v{vT0}")
    a(f"v_xor_b32 v{vT3}, v{vT1}, v{vT2}")
    a(f"s_lshl_b32 s44, s{sRB}, 7")
    a(f"s_lshl_b32 s45, s{sL}, 5")
    a("s_add_u32 s44, s44, s45")
    a(f"v_add_u32 v{vT0}, s44, v{vT0}")
    a(f"v_lshlrev_b32 v{vT0}, 10, v{vT0}")
    a(f"v_lshl_add_u32 v{vXo}, v{vT3}, 4, v{vT0}")
    a(f"v_xor_b32 v{vT3}, 4, v{vT3}")
    a(f"v_lshl_add_u32 v{vXo2}, v{vT3}, 4, v{vT0}")
    for j in range(3):
        a(f"v_add_u32 v{vT0}, {j*64}, v{vLane}")
        a(f"v_mul_u32_u24 v{vT1}, 43691, v{vT0}")
        a(f"v_lshrrev_b32 v{vT1}, 19, v{vT1}")
        a(f"v_mul_u32_u24 v{vT2}, 12, v{vT1}")
        a(f"v_sub_u32 v{vT2}, v{vT0}, v{vT2}")
        a(f"s_lshl_b32 s44, s{sL}, 4")
        a(f"v_add_u32 v{vT1}, s44, v{vT1}")
        a(f"v_mul_u32_u24 v{vT3}, 3072, v{vT1}")
        a(f"v_lshrrev_b32 v{vT0}, 2, v{vT2}")
        a(f"v_lshl_add_u32 v{vT3}, v{vT0}, 10, v{vT3}")
        a(f"v_and_b32 v{vT0}, 3, v{vT2}")
        a(f"v_lshl_add_u32 v{vT3}, v{vT0}, 4, v{vT3}")
        a(f"s_lshl_b32 s44, s{sCG}, 6")
        a(f"v_add_u32 v{vWq[j]}, s44, v{vT3}")
        a(f"v_mul_u32_u24 v{vT3}, 2752, v{vT1}")
        a(f"v_lshl_add_u32 v{vT3}, v{vT2}, 4, v{vT3}")
        a(f"s_lshl_b32 s44, s{sHC}, 1")
        a(f"v_add_u32 v{vW1[j]}, s44, v{vT3}")
    sXd, sWd = 43, 50
    a(f"s_lshl_b32 s{sXd}, s{sL}, 12")
    a(f"s_mul_i32 s{sWd}, s{sL}, 3072")
    def dma_stage(s):
        base = (s % NBUF) * STG
        for j in range(4):
            a(f"s_add_u32 m0, s{sXd}, {base + XO + j*1024}")
            a(f"s_mov_b32 s44, {j*8192 + s*128}")
            a(f"buffer_load_dwordx4 v{vXo if j%2==0 else vXo2}, {sr(sX,4)}, s44 offen lds")
        for j in range(3):
            a(f"s_add_u32 m0, s{sWd}, {base + WQO + j*1024}")
            a(f"s_mov_b32 s44, {s*64*3072}")
            a(f"buffer_load_dwordx4 v{vWq[j]}, {sr(sWQ,4)}, s44 offen lds")
        for j in range(3):
            a(f"s_add_u32 m0, s{sWd}, {base + W1O + j*1024}")
            a(f"s_mov_b32 s44, {s*64*2752}")
            a(f"buffer_load_dwordx4 v{vW1[j]}, {sr(sW1,4)}, s44 offen lds")
    dma_stage(0)
    for s in range(NST):
        if s + 1 < NST:
            dma_stage(s + 1)
            a("s_waitcnt vmcnt(10)")
        else:
            a("s_waitcnt vmcnt(0)")
        a("s_barrier")
    a("s_lshl_b32 s44, s2, 2")
    a(f"s_add_u32 s44, s44, s{sL}")
    a(f"v_lshrrev_b32 v{vT0}, 5, v{vLane}")
    a(f"v_lshlrev_b32 v{vT0}, 12, v{vT0}")
    a(f"v_and_b32 v{vT1}, 31, v{vLane}")
    a(f"v_lshl_add_u32 v{vT0}, v{vT1}, 1, v{vT0}")
    a(f"v_lshlrev_b32 v{vT2}, 4, v{vLane}")
    a.lab("K1_TRLOOP")
    a("s_lshr_b32 s45, s44, 4")
    a("s_and_b32 s46, s44, 15")
    a("s_lshl_b32 s45, s45, 14")
    a("s_lshl_b32 s46, s46, 6")
    a("s_add_u32 s45, s45, s46")
    for j in range(8):
        ro = j if j < 4 else 8 + j - 4
        a(f"s_add_u32 s46, s45, {ro*1024}")
        a(f"buffer_load_ushort v{16+j}, v{vT0}, {sr(sW2,4)}, s46 offen")
    a("s_waitcnt vmcnt(0)")
    for p in range(4):
        a(f"v_lshl_or_b32 v{24+p}, v{16+2*p+1}, 16, v{16+2*p}")
    a("s_lshl_b32 s46, s44, 10")
    a(f"s_add_u32 s46, s46, {WS_W2T}")
    a(f"buffer_store_dwordx4 v[24:27], v{vT2}, {sr(sWS,4)}, s46 offen")
    a("s_add_u32 s44, s44, 1024")
    a("s_cmp_lt_u32 s44, 1376")
    a("s_cbranch_scc1 K1_TRLOOP")
    a(f"s_cmp_lg_u32 s{sL}, 0")
    a("s_cbranch_scc1 K1_END")
    a(f"s_lshl_b32 s44, s{sRB}, 7")
    a(f"s_lshl_b32 s45, s{sCG}, 3")
    a("s_add_u32 s44, s44, s45")
    a("s_lshl_b32 s45, s44, 10")
    for i in range(8):
        a(f"s_add_u32 s46, s45, {i*1024}")
        a(f"buffer_load_dwordx4 {vr(32+4*i,4)}, v{vT2}, {sr(sX,4)}, s46 offen")
    a(f"buffer_load_dwordx4 v[64:67], v{vT2}, {sr(sGW,4)}, 0 offen")
    a("s_waitcnt vmcnt(0)")
    for r in range(4):
        a(f"v_lshlrev_b32 v{68+2*r}, 16, v{64+r}")
        a(f"v_and_b32 v{68+2*r+1}, 0xffff0000, v{64+r}")
    for i in range(8):
        for r in range(4):
            a(f"v_lshlrev_b32 v{vT0}, 16, v{32+4*i+r}")
            a(f"v_and_b32 v{vT1}, 0xffff0000, v{32+4*i+r}")
            if r == 0:
                a(f"v_mul_f32 v{80+i}, v{vT0}, v{68}")
            else:
                a(f"v_fma_f32 v{80+i}, v{vT0}, v{68+2*r}, v{80+i}")
            a(f"v_fma_f32 v{80+i}, v{vT1}, v{68+2*r+1}, v{80+i}")
    for off in (0x041F, 0x081F, 0x101F, 0x201F, 0x401F):
        for i in range(8):
            a(f"ds_swizzle_b32 v{88+i}, v{80+i} offset:{off}")
        a("s_waitcnt lgkmcnt(0)")
        for i in range(8):
            a(f"v_add_f32 v{80+i}, v{80+i}, v{88+i}")
    for i in range(8):
        a(f"v_mov_b32 v{88+i}, v{80+i}")
    a("s_nop 1")
    for i in range(8):
        a(f"v_permlane32_swap_b32 v{80+i}, v{88+i}")
    for i in range(8):
        a(f"v_add_f32 v{80+i}, v{80+i}, v{88+i}")
    for i in range(8):
        a(f"v_mul_f32 v{80+i}, {f32hex(-LOG2E)}, v{80+i}")
    for i in range(8):
        a(f"v_exp_f32 v{80+i}, v{80+i}")
    a("s_nop 0")
    for i in range(8):
        a(f"v_add_f32 v{80+i}, 1.0, v{80+i}")
    for i in range(8):
        a(f"v_rcp_f32 v{80+i}, v{80+i}")
    a("s_lshl_b32 s45, s44, 2")
    a(f"s_add_u32 s45, s45, {WS_G}")
    a(f"v_mov_b32 v{vT0}, 0")
    a("s_mov_b64 exec, 1")
    a(f"buffer_store_dwordx4 v[80:83], v{vT0}, {sr(sWS,4)}, s45 offen")
    a(f"buffer_store_dwordx4 v[84:87], v{vT0}, {sr(sWS,4)}, s45 offen offset:16")
    a.lab("K1_END")
    a("s_endpgm")
    kernel_desc(a, name, 128)

def gen_k2(a):
    name = "attn_kernel"
    kernel_header(a, name)
    sWS = 16
    sHead, sQC, sW = 20, 21, 22
    sMaskLo = 24
    sFlag = 26
    KL = 0; VL = 65536; FL = 131072; RB = 131072 + 256
    a("s_cmp_ge_u32 s2, 256")
    a("s_cbranch_scc1 K2_END")
    a("s_load_dwordx2 s[12:13], s[0:1], 80")
    a("s_and_b32 s44, s2, 7")
    a("s_lshr_b32 s45, s2, 3")
    a("s_lshl_b32 s44, s44, 2")
    a("s_and_b32 s46, s45, 3")
    a(f"s_add_u32 s{sHead}, s44, s46")
    a(f"s_lshr_b32 s{sQC}, s45, 2")
    vLane, vT0, vT1, vT2 = 1, 2, 3, 4
    a(f"v_and_b32 v{vLane}, 63, v0")
    a(f"v_lshrrev_b32 v{vT0}, 6, v0")
    a("s_nop 0")
    a(f"v_readfirstlane_b32 s{sW}, v{vT0}")
    a("s_waitcnt lgkmcnt(0)")
    srd(a, sWS, 12, WS_SIZE)
    vL16 = 5
    st = Stamps(a, 1); st()
    a(f"v_lshlrev_b32 v{vL16}, 4, v{vLane}")
    a(f"s_lshl_b32 s44, s{sHead}, 16")
    a(f"s_cmp_ge_u32 s{sW}, 8")
    a("s_cbranch_scc1 K2_GEMM")
    QF = 8
    a(f"s_lshl_b32 s47, s{sQC}, 3")
    a(f"s_add_u32 s47, s47, s{sW}")
    a("s_lshl_b32 s47, s47, 10")
    a("s_add_u32 s47, s47, s44")
    a(f"s_add_u32 s47, s47, {WS_Q}")
    a(f"buffer_load_dwordx4 {vr(QF,4)}, v{vL16}, {sr(sWS,4)}, s47 offen")
    MN = 16
    S = [32, 48]
    O = 64
    P = 80
    KF = [88, 92, 96]
    VF = [100, 104, 108, 112]
    vKa, vVa = 6, 7
    vRun = 12; vFl = 13
    a(f"v_mov_b32 v{vFl}, {FL}")
    a(f"v_mov_b32 v{vT1}, 0")
    a(f"v_lshl_add_u32 v{vT0}, v{vLane}, 2, v{vFl}")
    a(f"s_cmp_lg_u32 s{sW}, 0")
    a("s_cbranch_scc1 K2_NOZ")
    a(f"ds_write_b32 v{vT0}, v{vT1}")
    a("s_waitcnt lgkmcnt(0)")
    a.lab("K2_NOZ")
    a("s_barrier")
    a(f"v_and_b32 v{vT0}, 31, v{vLane}")
    a(f"v_mov_b32 v{vT2}, 0x3f803f80")
    a(f"v_and_b32 v14, 27, v{vT0}")
    a("v_cmp_eq_u32 vcc, 16, v14")
    a("s_nop 1")
    a(f"v_cndmask_b32 v{vT1}, v{vT1}, v{vT2}, vcc")
    for b in VF:
        for r in range(4):
            a(f"v_mov_b32 v{b+r}, v{vT1}")
    a(f"v_cmp_gt_u32 vcc, 16, v{vT0}")
    a("s_nop 1")
    a(f"s_mov_b64 {sr(sMaskLo,2)}, vcc")
    a(f"v_mov_b32 v{vKa}, v{vL16}")
    a(f"v_lshrrev_b32 v{vT1}, 5, v{vLane}")
    a(f"v_lshlrev_b32 v{vT1}, 8, v{vT1}")
    a(f"v_and_b32 v{vT2}, 15, v{vLane}")
    a(f"v_lshl_add_u32 v{vVa}, v{vT2}, 4, v{vT1}")
    a(f"v_add_u32 v{vVa}, {VL}, v{vVa}")
    lc = [0]
    def wait_chunk(c):
        lc[0] += 1
        lb = f"K2_WC{lc[0]}"
        a.lab(lb)
        a(f"ds_read_b32 v{vT0}, v{vFl} offset:{4*c}")
        a("s_waitcnt lgkmcnt(0)")
        a(f"v_readfirstlane_b32 s47, v{vT0}")
        a("s_nop 3")
        a("s_cmp_ge_u32 s47, 4")
        a(f"s_cbranch_scc1 {lb}D")
        a("s_sleep 2")
        a(f"s_branch {lb}")
        a.lab(lb + "D")
    st()
    wait_chunk(0)
    a("s_waitcnt vmcnt(0)")
    st()
    a(f"ds_read_b128 {vr(KF[0],4)}, v{vKa}")
    a("s_waitcnt lgkmcnt(0)")
    a(f"v_mfma_f32_32x32x16_bf16 {vr(S[0],16)}, {vr(KF[0],4)}, {vr(QF,4)}, 0")
    a("s_nop 15")
    a(f"v_max3_f32 v{vRun}, v{S[0]}, v{S[0]+1}, v{S[0]+2}")
    for r in range(3, 15, 2):
        a(f"v_max3_f32 v{vRun}, v{vRun}, v{S[0]+r}, v{S[0]+r+1}")
    a(f"v_max_f32 v{vRun}, v{vRun}, v{S[0]+15}")
    a(f"v_mov_b32 v{vT1}, v{vRun}")
    a("s_nop 1")
    a(f"v_permlane32_swap_b32 v{vRun}, v{vT1}")
    a(f"v_max_f32 v{vRun}, v{vRun}, v{vT1}")
    a(f"v_sub_f32 v{vRun}, 0, v{vRun}")
    for r in range(16):
        a(f"v_mov_b32 v{MN+r}, v{vRun}")
    a(f"s_mov_b32 s{sFlag}, 0")
    st()
    NT = 64
    a.lab("K2_PASS2")
    def rdK(t):
        a(f"ds_read_b128 {vr(KF[t%3],4)}, v{vKa} offset:{t*1024}")
    def rdV(t):
        a(f"s_mov_b64 exec, {sr(sMaskLo,2)}")
        for g in range(2):
            a(f"ds_read_b128 {vr(VF[(t%2)*2+g],4)}, v{vVa} offset:{(2*t+g)*512}")
        a("s_mov_b64 exec, -1")
    rdK(0); rdK(1); rdV(0)
    a("s_waitcnt lgkmcnt(0)")
    a(f"v_mfma_f32_32x32x16_bf16 {vr(S[0],16)}, {vr(KF[0],4)}, {vr(QF,4)}, {vr(MN,16)}")
    a("s_nop 7")
    for t in range(NT):
        sb = S[t % 2]
        if (t + 2) % 16 == 0 and t + 2 < NT:
            wait_chunk((t + 2) // 16)
        if t + 2 < NT: rdK(t + 2)
        if t + 1 < NT: rdV(t + 1)
        nout = (1 if t + 2 < NT else 0) + (2 if t + 1 < NT else 0)
        a(f"s_waitcnt lgkmcnt({nout})")
        if t + 1 < NT:
            a(f"v_mfma_f32_32x32x16_bf16 {vr(S[(t+1)%2],16)}, {vr(KF[(t+1)%3],4)}, {vr(QF,4)}, {vr(MN,16)}")
        for g in range(2):
            for r in range(8):
                a(f"v_exp_f32 v{sb+8*g+r}, v{sb+8*g+r}")
            for p in range(4):
                a(f"v_cvt_pk_bf16_f32 v{P+4*g+p}, v{sb+8*g+2*p}, v{sb+8*g+2*p+1}")
            a("s_nop 1")
            cc = "0" if (t == 0 and g == 0) else vr(O, 16)
            a(f"v_mfma_f32_32x32x16_bf16 {vr(O,16)}, {vr(VF[(t%2)*2+g],4)}, {vr(P+4*g,4)}, {cc}")
    a("s_nop 15")
    a(f"s_cmp_eq_u32 s{sFlag}, 1")
    a("s_cbranch_scc1 K2_EPI")
    a(f"v_cmp_ngt_f32 vcc, {f32hex(2.0**60)}, v{O+8}")
    a("s_nop 4")
    a("s_cmp_eq_u64 vcc, 0")
    a("s_cbranch_scc1 K2_EPI")
    a(f"v_mov_b32 v{vRun}, 0xff800000")
    a("s_mov_b32 s47, 0")
    a(f"v_mov_b32 v{vT0}, v{vKa}")
    a.lab("K2_P1LOOP")
    a(f"ds_read_b128 {vr(KF[0],4)}, v{vT0}")
    a("s_waitcnt lgkmcnt(0)")
    a(f"v_mfma_f32_32x32x16_bf16 {vr(S[0],16)}, {vr(KF[0],4)}, {vr(QF,4)}, 0")
    a("s_nop 15")
    for r in range(0, 16, 2):
        a(f"v_max3_f32 v{vRun}, v{vRun}, v{S[0]+r}, v{S[0]+r+1}")
    a(f"v_add_u32 v{vT0}, 1024, v{vT0}")
    a("s_add_u32 s47, s47, 1")
    a("s_cmp_lt_u32 s47, 64")
    a("s_cbranch_scc1 K2_P1LOOP")
    a(f"v_mov_b32 v{vT1}, v{vRun}")
    a("s_nop 1")
    a(f"v_permlane32_swap_b32 v{vRun}, v{vT1}")
    a(f"v_max_f32 v{vRun}, v{vRun}, v{vT1}")
    a(f"v_sub_f32 v{vRun}, 0, v{vRun}")
    for r in range(16):
        a(f"v_mov_b32 v{MN+r}, v{vRun}")
    a(f"s_mov_b32 s{sFlag}, 1")
    a("s_branch K2_PASS2")
    a.lab("K2_EPI")
    st()
    a(f"v_rcp_f32 v{vT0}, v{O+8}")
    a("s_nop 0")
    for r in range(8):
        a(f"v_mul_f32 v{O+r}, v{O+r}, v{vT0}")
    for p in range(4):
        a(f"v_cvt_pk_bf16_f32 v{P+p}, v{O+2*p}, v{O+2*p+1}")
    a(f"s_lshl_b32 s47, s{sQC}, 8")
    a(f"s_lshl_b32 s48, s{sW}, 5")
    a("s_add_u32 s47, s47, s48")
    a(f"v_and_b32 v{vT0}, 31, v{vLane}")
    a(f"v_add_u32 v{vT0}, s47, v{vT0}")
    a(f"v_lshlrev_b32 v{vT0}, 10, v{vT0}")
    a(f"v_lshrrev_b32 v{vT1}, 5, v{vLane}")
    a(f"v_lshl_add_u32 v{vT0}, v{vT1}, 4, v{vT0}")
    a(f"s_lshl_b32 s47, s{sHead}, 5")
    a(f"s_add_u32 s47, s47, {WS_O}")
    a(f"buffer_store_dwordx4 {vr(P,4)}, v{vT0}, {sr(sWS,4)}, s47 offen")
    if STAMP: a("s_waitcnt vmcnt(0)")
    st()
    st.dump(sWS, sW, 12)
    a("s_endpgm")

    a.lab("K2_GEMM")
    sL = 23
    a(f"s_sub_u32 s{sL}, s{sW}, 8")
    vFl = 6; vOne = 7
    a(f"v_mov_b32 v{vFl}, {FL}")
    a(f"v_mov_b32 v{vOne}, 1")
    a(f"s_lshl_b32 s45, s{sL}, 12")
    a("s_add_u32 s46, s44, s45")
    def issue_chunk(c):
        for (wsb, ldsb) in ((WS_K, KL), (WS_V, VL)):
            for i in range(4):
                a(f"s_add_u32 m0, s45, {ldsb + c*16384 + i*1024}")
                a(f"s_add_u32 s47, s46, {wsb + c*16384 + i*1024}")
                a(f"buffer_load_dwordx4 v{vL16}, {sr(sWS,4)}, s47 offen lds")
    def signal(c):
        a("s_mov_b64 exec, 1")
        a(f"ds_add_u32 v{vFl}, v{vOne} offset:{4*c}")
        a("s_mov_b64 exec, -1")
    a("s_barrier")
    st.n = 1
    issue_chunk(0)
    issue_chunk(1)
    a("s_waitcnt vmcnt(8)"); signal(0)
    issue_chunk(2)
    a("s_waitcnt vmcnt(8)"); signal(1)
    issue_chunk(3)
    a("s_waitcnt vmcnt(8)"); signal(2)
    a("s_waitcnt vmcnt(0)"); signal(3)
    st()
    ACC = 64
    FR = [8, 24, 40]
    sA, sB = 27, 28
    a(f"s_mul_i32 s47, s{sL}, 21")
    a(f"s_lshl_b32 s48, s{sHead}, 1")
    a("s_mul_i32 s48, s48, 86")
    a("s_add_u32 s48, s48, s47")
    a("s_lshl_b32 s48, s48, 10")
    a(f"s_add_u32 s{sA}, s48, {WS_ACT}")
    a("s_lshl_b32 s48, s47, 4")
    a(f"s_lshl_b32 s49, s{sQC}, 1")
    a("s_add_u32 s48, s48, s49")
    a("s_lshl_b32 s48, s48, 10")
    a(f"s_add_u32 s{sB}, s48, {WS_W2T}")
    def gl(i, fr):
        a(f"s_add_u32 s47, s{sA}, {i*1024}")
        a(f"buffer_load_dwordx4 {vr(fr,4)}, v{vL16}, {sr(sWS,4)}, s47 offen")
        a(f"s_add_u32 s47, s{sA}, {i*1024 + 86*1024}")
        a(f"buffer_load_dwordx4 {vr(fr+4,4)}, v{vL16}, {sr(sWS,4)}, s47 offen")
        a(f"s_add_u32 s47, s{sB}, {i*16384}")
        a(f"buffer_load_dwordx4 {vr(fr+8,4)}, v{vL16}, {sr(sWS,4)}, s47 offen")
        a(f"buffer_load_dwordx4 {vr(fr+12,4)}, v{vL16}, {sr(sWS,4)}, s47 offen offset:1024")
    def mm(fr, first):
        for aa in range(2):
            for bb in range(2):
                d = ACC + (aa * 2 + bb) * 16
                cc = "0" if first else vr(d, 16)
                a(f"v_mfma_f32_32x32x16_bf16 {vr(d,16)}, {vr(fr+8+4*bb,4)}, {vr(fr+4*aa,4)}, {cc}")
    NK = 21
    gl(0, FR[0]); gl(1, FR[1])
    for i in range(NK):
        if i + 2 < NK:
            gl(i + 2, FR[(i + 2) % 3])
            a("s_waitcnt vmcnt(8)")
        elif i + 1 < NK:
            a("s_waitcnt vmcnt(4)")
        else:
            a("s_waitcnt vmcnt(0)")
        mm(FR[i % 3], i == 0)
    a(f"s_cmp_ge_u32 s{sL}, 2")
    a("s_cbranch_scc1 K2_NOX")
    a(f"s_mul_i32 s48, s{sL}, 20")
    a("s_sub_u32 s48, 84, s48")
    a("s_lshl_b32 s49, s48, 10")
    a(f"s_add_u32 s{sA}, s{sA}, s49")
    a("s_lshl_b32 s49, s48, 14")
    a(f"s_add_u32 s{sB}, s{sB}, s49")
    gl(0, FR[0])
    a("s_waitcnt vmcnt(0)")
    mm(FR[0], False)
    a.lab("K2_NOX")
    a("s_nop 15")
    st()
    vRa = 8
    a(f"v_add_u32 v{vRa}, {RB}, v{vL16}")
    a(f"s_cmp_eq_u32 s{sL}, 3")
    a("s_cbranch_scc1 K2_RW")
    a(f"s_sub_u32 s48, 3, s{sL}")
    a.lab("K2_RSPIN")
    a(f"ds_read_b32 v{vT0}, v{vFl} offset:32")
    a("s_waitcnt lgkmcnt(0)")
    a(f"v_readfirstlane_b32 s47, v{vT0}")
    a("s_nop 3")
    a("s_cmp_ge_u32 s47, s48")
    a("s_cbranch_scc1 K2_RGO")
    a("s_sleep 4")
    a("s_branch K2_RSPIN")
    a.lab("K2_RGO")
    for half in range(2):
        for i in range(8):
            a(f"ds_read_b128 {vr(12+4*i,4)}, v{vRa} offset:{(8*half+i)*1024}")
        a("s_waitcnt lgkmcnt(0)")
        for i in range(32):
            a(f"v_add_f32 v{ACC+32*half+i}, v{ACC+32*half+i}, v{12+i}")
    a(f"s_cmp_eq_u32 s{sL}, 0")
    a("s_cbranch_scc1 K2_RST")
    a.lab("K2_RW")
    for i in range(16):
        a(f"ds_write_b128 v{vRa}, {vr(ACC+4*i,4)} offset:{i*1024}")
    a("s_waitcnt lgkmcnt(0)")
    a("s_mov_b64 exec, 1")
    a(f"ds_add_u32 v{vFl}, v{vOne} offset:32")
    a("s_waitcnt lgkmcnt(0)")
    a("s_mov_b64 exec, -1")
    st(); st(); st()
    st.dump(sWS, sW, 12)
    a("s_endpgm")
    a.lab("K2_RST")
    st.n = 3
    for aa in range(2):
        for bb in range(2):
            a(f"s_lshl_b32 s47, s{sHead}, 1")
            a(f"s_add_u32 s47, s47, {aa}")
            a("s_lshl_b32 s47, s47, 4")
            a(f"s_lshl_b32 s48, s{sQC}, 1")
            a("s_add_u32 s47, s47, s48")
            a(f"s_add_u32 s47, s47, {bb}")
            a("s_lshl_b32 s47, s47, 12")
            a(f"s_add_u32 s47, s47, {WS_B}")
            for i in range(4):
                a(f"buffer_store_dwordx4 {vr(ACC+(aa*2+bb)*16+4*i,4)}, v{vL16}, {sr(sWS,4)}, s47 offen offset:{i*1024}")
    st(); st(); st()
    st.dump(sWS, sW, 12)
    a.lab("K2_END")
    a("s_endpgm")
    kernel_desc(a, name, 128)

def gen_k3(a):
    name = "out_kernel"
    kernel_header(a, name)
    sWS, sWO, sOut = 16, 20, 36
    sRB, sCB, sW, sWM, sWN = 40, 41, 42, 43, 49
    STG = 32768; AO = 0; BO = 16384; NST = 4
    a("s_cmp_ge_u32 s2, 256")
    a("s_cbranch_scc1 K3_END")
    a("s_load_dwordx2 s[6:7], s[0:1], 16")
    a("s_load_dwordx2 s[12:13], s[0:1], 64")
    a("s_load_dwordx2 s[14:15], s[0:1], 80")
    a("s_and_b32 s44, s2, 7")
    a("s_lshr_b32 s45, s2, 3")
    a("s_lshl_b32 s44, s44, 2")
    a("s_and_b32 s46, s45, 3")
    a(f"s_add_u32 s{sRB}, s44, s46")
    a(f"s_lshr_b32 s{sCB}, s45, 2")
    vLane, vT0, vT1, vT2, vT3 = 1, 2, 3, 4, 5
    a(f"v_and_b32 v{vLane}, 63, v0")
    a(f"v_lshrrev_b32 v{vT0}, 6, v0")
    a("s_nop 0")
    a(f"v_readfirstlane_b32 s{sW}, v{vT0}")
    a("s_waitcnt lgkmcnt(0)")
    srd(a, sWS, 14, WS_SIZE)
    srd(a, sWO, 6, 512 * 512 * 2)
    srd(a, sOut, 12, 2048 * 512 * 2)
    st = Stamps(a, 2); st()
    a(f"s_lshr_b32 s{sWM}, s{sW}, 1")
    a(f"s_and_b32 s{sWN}, s{sW}, 1")
    vAo = [6, 7, 8, 9]
    for j in range(4):
        a(f"v_lshrrev_b32 v{vT0}, 4, v{vLane}")
        a(f"v_add_u32 v{vT0}, {4*j}, v{vT0}")
        a(f"v_and_b32 v{vT1}, 15, v{vLane}")
        a(f"v_xor_b32 v{vT1}, v{vT1}, v{vT0}")
        a(f"s_lshl_b32 s44, s{sRB}, 6")
        a(f"s_lshl_b32 s45, s{sW}, 4")
        a("s_add_u32 s44, s44, s45")
        a(f"v_add_u32 v{vT0}, s44, v{vT0}")
        a(f"v_lshlrev_b32 v{vT2}, 10, v{vT0}")
        a(f"v_lshl_add_u32 v{vAo[j]}, v{vT1}, 4, v{vT2}")
    vBo = 14
    a(f"v_lshrrev_b32 v{vT0}, 3, v{vLane}")
    a(f"v_and_b32 v{vT1}, 7, v{vLane}")
    a(f"v_bfe_u32 v{vT2}, v{vT0}, 1, 1")
    a(f"v_lshlrev_b32 v{vT2}, 2, v{vT2}")
    a(f"v_xor_b32 v{vT1}, v{vT1}, v{vT2}")
    a(f"s_lshl_b32 s44, s{sW}, 5")
    a(f"v_add_u32 v{vT0}, s44, v{vT0}")
    a(f"v_lshlrev_b32 v{vT0}, 10, v{vT0}")
    a(f"v_lshl_add_u32 v{vT0}, v{vT1}, 4, v{vT0}")
    a(f"s_lshl_b32 s44, s{sCB}, 7")
    a(f"v_add_u32 v{vBo}, s44, v{vT0}")
    sD = 50
    a(f"s_lshl_b32 s{sD}, s{sW}, 12")
    for si in range(NST):
        base = si * STG
        for j in range(4):
            a(f"s_add_u32 m0, s{sD}, {base + AO + j*1024}")
            a(f"s_mov_b32 s44, {WS_O + si*256}")
            a(f"buffer_load_dwordx4 v{vAo[j]}, {sr(sWS,4)}, s44 offen lds")
        for j in range(4):
            a(f"s_add_u32 m0, s{sD}, {base + BO + j*1024}")
            a(f"s_mov_b32 s44, {(si*128 + 8*j)*1024}")
            a(f"buffer_load_dwordx4 v{vBo}, {sr(sWO,4)}, s44 offen lds")
    vTok = 16; vG = 17; BB = 80
    a(f"v_and_b32 v{vT0}, 31, v{vLane}")
    a(f"s_lshl_b32 s44, s{sRB}, 6")
    a(f"s_lshl_b32 s45, s{sWM}, 5")
    a("s_add_u32 s44, s44, s45")
    a(f"v_add_u32 v{vTok}, s44, v{vT0}")
    a(f"v_lshlrev_b32 v{vT0}, 2, v{vTok}")
    a(f"s_mov_b32 s44, {WS_G}")
    a(f"buffer_load_dword v{vG}, v{vT0}, {sr(sWS,4)}, s44 offen")
    a(f"s_lshl_b32 s47, s{sRB}, 1")
    a(f"s_add_u32 s47, s47, s{sWM}")
    a("s_lshl_b32 s47, s47, 4")
    a(f"s_lshl_b32 s48, s{sCB}, 1")
    a("s_add_u32 s47, s47, s48")
    a(f"s_add_u32 s47, s47, s{sWN}")
    a("s_lshl_b32 s47, s47, 12")
    a(f"s_add_u32 s47, s47, {WS_B}")
    a(f"v_lshlrev_b32 v{vT1}, 4, v{vLane}")
    for i in range(4):
        a(f"buffer_load_dwordx4 {vr(BB+4*i,4)}, v{vT1}, {sr(sWS,4)}, s47 offen offset:{i*1024}")
    vAa0 = [18 + i for i in range(8)]
    vBa0 = 26
    a(f"v_and_b32 v{vT0}, 31, v{vLane}")
    a(f"v_lshrrev_b32 v{vT1}, 5, v{vLane}")
    a(f"v_and_b32 v{vT2}, 15, v{vT0}")
    a(f"s_lshl_b32 s44, s{sWM}, 5")
    a(f"v_add_u32 v{vT0}, s44, v{vT0}")
    a(f"v_lshlrev_b32 v{vT0}, 8, v{vT0}")
    for kk in range(8):
        a(f"v_add_u32 v{vT3}, {2*kk}, v{vT1}")
        a(f"v_xor_b32 v{vT3}, v{vT3}, v{vT2}")
        a(f"v_lshl_add_u32 v{vAa0[kk]}, v{vT3}, 4, v{vT0}")
    a(f"v_lshrrev_b32 v{vT0}, 5, v{vLane}")
    a(f"v_lshlrev_b32 v{vT0}, 2, v{vT0}")
    a(f"v_bfe_u32 v{vT1}, v{vLane}, 2, 2")
    a(f"v_add_u32 v{vT0}, v{vT0}, v{vT1}")
    a(f"v_lshlrev_b32 v{vT0}, 7, v{vT0}")
    a(f"v_bfe_u32 v{vT2}, v{vLane}, 3, 1")
    a(f"v_xor_b32 v{vT2}, s{sWN}, v{vT2}")
    a(f"v_lshl_add_u32 v{vT0}, v{vT2}, 6, v{vT0}")
    a(f"v_bfe_u32 v{vT1}, v{vLane}, 4, 1")
    a(f"v_lshl_add_u32 v{vT0}, v{vT1}, 5, v{vT0}")
    a(f"v_and_b32 v{vT1}, 3, v{vLane}")
    a(f"v_lshl_add_u32 v{vBa0}, v{vT1}, 3, v{vT0}")
    a(f"v_add_u32 v{vBa0}, {BO}, v{vBa0}")
    vBa1 = 27
    a(f"v_add_u32 v{vBa1}, {2*STG}, v{vBa0}")
    vAa1 = [28 + i for i in range(8)]
    for kk in range(8):
        a(f"v_add_u32 v{vAa1[kk]}, {2*STG}, v{vAa0[kk]}")
    FA = [96 + 8*i for i in range(8)]
    ACC = 64
    st()
    for si in range(NST):
        a(f"s_waitcnt vmcnt({5 + 8*(NST-1-si)})")
        a("s_barrier")
        if si == 0: st()
        va = vAa0 if si < 2 else vAa1
        vb = vBa0 if si < 2 else vBa1
        so = (si % 2) * STG
        for kk in range(8):
            a(f"ds_read_b128 {vr(FA[kk],4)}, v{va[kk]} offset:{so}")
            for half in range(2):
                a(f"ds_read_b64_tr_b16 {vr(FA[kk]+4+2*half,2)}, v{vb} offset:{so + (16*kk + 8*half)*128}")
            if kk % 4 == 3:
                pass
        for kk in range(8):
            a(f"s_waitcnt lgkmcnt({min(15, 3*(7-kk))})")
            cc = "0" if (si == 0 and kk == 0) else vr(ACC, 16)
            a(f"v_mfma_f32_32x32x16_bf16 {vr(ACC,16)}, {vr(FA[kk]+4,4)}, {vr(FA[kk],4)}, {cc}")
    st()
    a("s_waitcnt vmcnt(0)")
    a("s_nop 15")
    for r in range(16):
        a(f"v_sub_f32 v{ACC+r}, v{ACC+r}, v{BB+r}")
    for r in range(16):
        a(f"v_fma_f32 v{ACC+r}, v{vG}, v{ACC+r}, v{BB+r}")
    for p in range(8):
        a(f"v_cvt_pk_bf16_f32 v{BB+p}, v{ACC+2*p}, v{ACC+2*p+1}")
    a(f"v_lshlrev_b32 v{vT0}, 10, v{vTok}")
    a(f"v_lshrrev_b32 v{vT1}, 5, v{vLane}")
    a(f"v_lshl_add_u32 v{vT0}, v{vT1}, 3, v{vT0}")
    a(f"s_lshl_b32 s44, s{sCB}, 7")
    a(f"s_lshl_b32 s45, s{sWN}, 6")
    a("s_add_u32 s44, s44, s45")
    for g in range(4):
        a(f"buffer_store_dwordx2 {vr(BB+2*g,2)}, v{vT0}, {sr(sOut,4)}, s44 offen offset:{16*g}")
    st()
    if STAMP: a("s_waitcnt vmcnt(0)")
    st()
    st.dump(sWS, sW, 4)
    a.lab("K3_END")
    a("s_endpgm")
    kernel_desc(a, name, 160)

def main():
    a = A()
    hdr = open(f"cdna_kernels/{NAME}.s.ref").read().splitlines()
    for ln in hdr:
        if ln.startswith("; @launch") or ln.startswith("; Override") or ln.startswith("; grid=ceil"):
            continue
        if not ln.startswith(";"):
            break
        a.raw(ln)
    a.raw("; @launch kernel=proj_kernel grid=(256,1,1) block=(768,1,1) lds=122880")
    a.raw("; @launch kernel=attn_kernel grid=(256,1,1) block=(768,1,1) lds=147712")
    a.raw("; @launch kernel=out_kernel grid=(256,1,1) block=(256,1,1) lds=131072")
    a.raw('.amdgcn_target "amdgcn-amd-amdhsa--gfx950"')
    gen_k1(a)
    gen_k2(a)
    gen_k3(a)
    out = sys.argv[1] if len(sys.argv) > 1 else f"cdna_kernels/{NAME}.s"
    open(out, "w").write("\n".join(a.l) + "\n")
main()
```

```python
import sys
NAME = "gated_mix__softmax_full_mha__dense_activation_mish__prompt"

WS_Q = 0
WS_K = 2 << 20
WS_V = 4 << 20
WS_ACT = 6 << 20
WS_O = 12 << 20
WS_G = 14 << 20
WS_B = 16 << 20
WS_W2T = 20 << 20
WS_WOT = 22 << 20
WS_SIZE = 268435456
LOG2E = 1.4426950408889634

import struct
def f32hex(x):
    return "0x%08x" % struct.unpack("<I", struct.pack("<f", x))[0]

import os
STFLAGS = os.environ.get("STFLAGS", "")
WT = os.environ.get("WT", "sc1")
class A:
    def __init__(self):
        self.l = []
    def __call__(self, s):
        if STFLAGS and s.startswith("buffer_store"):
            s = s + " " + STFLAGS
        self.l.append("    " + s)
    def lab(self, s):
        self.l.append(s + ":")
    def raw(self, s):
        self.l.append(s)
    def c(self, s):
        self.l.append("    ; " + s)

def vr(b, n=1):
    return f"v{b}" if n == 1 else f"v[{b}:{b+n-1}]"
def sr(b, n=1):
    return f"s{b}" if n == 1 else f"s[{b}:{b+n-1}]"

def srd(a, dst, ptr, size):
    a(f"s_mov_b32 s{dst}, s{ptr}")
    a(f"s_and_b32 s{dst+1}, s{ptr+1}, 0xffff")
    a(f"s_mov_b32 s{dst+2}, {size}")
    a(f"s_mov_b32 s{dst+3}, 0x00020000")

def kernel_header(a, name):
    a.raw(".text")
    a.raw(f".globl {name}")
    a.raw(".p2align 8")
    a.raw(f".type {name},@function")
    a.lab(name)

def kernel_desc(a, name, vgpr, sgpr=102, accum=None):
    if accum is None:
        accum = (vgpr + 3) // 4 * 4
    a.raw('.section .rodata,"a"')
    a.raw(".p2align 6")
    a.raw(f".amdhsa_kernel {name}")
    a.raw(f"  .amdhsa_next_free_vgpr {vgpr}")
    a.raw(f"  .amdhsa_next_free_sgpr {sgpr}")
    a.raw(f"  .amdhsa_accum_offset {accum}")
    a.raw("  .amdhsa_group_segment_fixed_size 0")
    a.raw("  .amdhsa_kernarg_size 88")
    a.raw("  .amdhsa_user_sgpr_count 2")
    a.raw("  .amdhsa_user_sgpr_kernarg_segment_ptr 1")
    a.raw("  .amdhsa_system_sgpr_workgroup_id_x 1")
    a.raw(".end_amdhsa_kernel")

import os
STAMP = int(os.environ.get("STAMP", "0"))
WS_DBG = 24 << 20
class Stamps:
    def __init__(self, a, kid):
        self.a = a; self.n = 0; self.kid = kid
    def __call__(self):
        if not STAMP: return
        if self.n == 0: self.a("s_memrealtime s[96:97]")
        self.a(f"s_memtime s[{70+2*self.n}:{71+2*self.n}]")
        self.n += 1
    def dump(self, sWS, sWave, nwaves):
        if not STAMP: return
        a = self.a
        a("s_memrealtime s[98:99]")
        a("s_waitcnt lgkmcnt(0)")
        a(f"s_mul_i32 s68, s2, {nwaves}")
        a(f"s_add_u32 s68, s68, s{sWave}")
        a("s_lshl_b32 s68, s68, 7")
        a(f"s_add_u32 s68, s68, {WS_DBG + self.kid * (1 << 20)}")
        a("v_mov_b32 v2, 0")
        for i in range(self.n):
            a(f"v_mov_b32 v3, s{70+2*i}")
            a(f"buffer_store_dword v3, v2, {sr(sWS,4)}, s68 offen offset:{4*i}")
        for i, sg in ((30, 96), (31, 98)):
            a(f"v_mov_b32 v3, s{sg}")
            a(f"buffer_store_dword v3, v2, {sr(sWS,4)}, s68 offen offset:{4*i}")

def mish_block(a, regs, bias, tmp):
    n = len(regs)
    t = tmp[:n]; u = tmp[n:2*n]
    for i in range(n): a(f"v_add_f32 v{regs[i]}, v{regs[i]}, v{bias[i]}")
    for i in range(n): a(f"v_mul_f32 v{t[i]}, {f32hex(LOG2E)}, v{regs[i]}")
    for i in range(n): a(f"v_min_f32 v{t[i]}, {f32hex(30.0)}, v{t[i]}")
    for i in range(n): a(f"v_exp_f32 v{t[i]}, v{t[i]}")
    a("s_nop 0")
    for i in range(n): a(f"v_add_f32 v{u[i]}, 2.0, v{t[i]}")
    for i in range(n): a(f"v_mul_f32 v{u[i]}, v{u[i]}, v{t[i]}")
    for i in range(n): a(f"v_add_f32 v{t[i]}, 2.0, v{u[i]}")
    for i in range(n): a(f"v_rcp_f32 v{t[i]}, v{t[i]}")
    a("s_nop 0")
    for i in range(n): a(f"v_mul_f32 v{u[i]}, v{u[i]}, v{t[i]}")
    for i in range(n): a(f"v_mul_f32 v{regs[i]}, v{regs[i]}, v{u[i]}")


def gen_k1(a):
    name = "proj_kernel"
    kernel_header(a, name)
    STG = 40960; XO = 0; WQO = 16384; W1O = 28672; NBUF = 3; NST = 8
    sX, sWQ, sW1, sB1, sWS, sW2, sGW = 16, 20, 24, 28, 32, 52, 56
    sRB, sCG, sW, sHC, sRT, sNH = 36, 37, 38, 39, 40, 41
    a("s_cmp_ge_u32 s2, 256")
    a("s_cbranch_scc1 K1_END")
    a("s_load_dwordx4 s[4:7], s[0:1], 0")
    a("s_load_dwordx4 s[8:11], s[0:1], 32")
    a("s_load_dwordx2 s[12:13], s[0:1], 80")
    a("s_load_dwordx4 s[60:63], s[0:1], 48")
    a("s_load_dwordx2 s[64:65], s[0:1], 16")
    a("s_and_b32 s44, s2, 7")
    a("s_lshr_b32 s45, s2, 3")
    a("s_and_b32 s46, s44, 3")
    a("s_lshl_b32 s46, s46, 2")
    a("s_and_b32 s47, s45, 3")
    a(f"s_add_u32 s{sRB}, s46, s47")
    a("s_lshr_b32 s46, s44, 2")
    a("s_lshl_b32 s46, s46, 3")
    a("s_lshr_b32 s47, s45, 2")
    a(f"s_add_u32 s{sCG}, s46, s47")
    a(f"s_mul_i32 s46, s{sCG}, 96")
    a(f"s_lshl_b32 s47, s{sCG}, 6")
    a("s_add_u32 s47, s47, 352")
    a(f"s_cmp_lt_u32 s{sCG}, 11")
    a(f"s_cselect_b32 s{sHC}, s46, s47")
    vLane, vT0, vT1, vT2, vT3 = 1, 2, 3, 4, 5
    a(f"v_and_b32 v{vLane}, 63, v0")
    a(f"v_lshrrev_b32 v{vT0}, 6, v0")
    a("s_nop 0")
    a(f"v_readfirstlane_b32 s{sW}, v{vT0}")
    a("s_waitcnt lgkmcnt(0)")
    srd(a, sX, 4, 2048 * 512 * 2)
    srd(a, sWQ, 6, 512 * 1536 * 2)
    srd(a, sW1, 8, 512 * 1376 * 2)
    srd(a, sB1, 10, 1376 * 2)
    srd(a, sWS, 12, WS_SIZE)
    srd(a, sW2, 60, 1376 * 512 * 2)
    srd(a, sGW, 62, 512 * 2)
    srd(a, 64, 64, 512 * 512 * 2)
    st = Stamps(a, 0); st()
    a(f"s_cmp_ge_u32 s{sW}, 8")
    a("s_cbranch_scc1 K1_LOADER")
    a(f"s_lshr_b32 s{sRT}, s{sW}, 1")
    a(f"s_lshr_b32 s44, s{sW}, 2")
    a(f"s_xor_b32 s44, s44, s{sW}")
    a(f"s_and_b32 s{sNH}, s44, 1")
    vXa0 = [14, 15, 16, 17]
    vWa0 = 18
    vXa = [19, 20, 21, 22]; vWa = 23
    a(f"v_and_b32 v{vT0}, 31, v{vLane}")
    a(f"v_lshrrev_b32 v{vT1}, 5, v{vLane}")
    a(f"v_lshrrev_b32 v{vT2}, 1, v{vT0}")
    a(f"v_and_b32 v{vT2}, 7, v{vT2}")
    a(f"s_lshl_b32 s44, s{sRT}, 5")
    a(f"v_add_u32 v{vT0}, s44, v{vT0}")
    a(f"v_lshlrev_b32 v{vT0}, 7, v{vT0}")
    for kk in range(4):
        a(f"v_add_u32 v{vT3}, {2*kk}, v{vT1}")
        a(f"v_xor_b32 v{vT3}, v{vT3}, v{vT2}")
        a(f"v_lshl_add_u32 v{vXa0[kk]}, v{vT3}, 4, v{vT0}")
    a(f"v_lshrrev_b32 v{vT0}, 5, v{vLane}")
    a(f"v_lshlrev_b32 v{vT0}, 3, v{vT0}")
    a(f"v_bfe_u32 v{vT1}, v{vLane}, 2, 2")
    a(f"v_add_u32 v{vT0}, v{vT0}, v{vT1}")
    a(f"v_mul_u32_u24 v{vT0}, 192, v{vT0}")
    a(f"v_bfe_u32 v{vT1}, v{vLane}, 4, 1")
    a(f"v_lshl_add_u32 v{vT0}, v{vT1}, 5, v{vT0}")
    a(f"v_and_b32 v{vT1}, 3, v{vLane}")
    a(f"v_lshl_add_u32 v{vWa0}, v{vT1}, 3, v{vT0}")

    XF = [24, 28]
    WF = [[32, 36, 40], [44, 48, 52]]
    ACC = 64
    def acc(t): return ACC + t * 16
    a(f"s_cmp_eq_u32 s{sNH}, 1")
    a("s_cbranch_scc1 K1_NH1")

    def set_stage_addr(s):
        base = (s % NBUF) * STG
        for kk in range(4):
            a(f"v_add_u32 v{vXa[kk]}, {base + XO}, v{vXa0[kk]}")
        a(f"v_add_u32 v{vWa}, {base + WQO}, v{vWa0}")

    def mainloop(nh):
        tiles = [(0, 0, 'T'), (0, 64, 'T'), (12288, 0, 'T')] if nh == 0 else [(0, 128, 'N'), (12288, 64, 'T'), (12288, 128, 'T')]
        def reads(kk, b):
            a(f"ds_read_b128 {vr(XF[b],4)}, v{vXa[kk]}")
            for t, (reg, col, _) in enumerate(tiles):
                for half in range(2):
                    a(f"ds_read_b64_tr_b16 {vr(WF[b][t]+2*half,2)}, v{vWa} offset:{reg + col + (16*kk + 4*half)*192}")
        st.n = 1
        a("s_barrier")
        st()
        set_stage_addr(0)
        reads(0, 0)
        steps = [(s, kk) for s in range(NST) for kk in range(4)]
        for i, (s, kk) in enumerate(steps):
            b = i % 2
            a("s_waitcnt lgkmcnt(0)")
            if kk == 3 and s < NST - 1:
                a("s_barrier")
                set_stage_addr(s + 1)
            if i + 1 < len(steps):
                reads(steps[i + 1][1], 1 - b)
            for t, (reg, col, ori) in enumerate(tiles):
                cc = "0" if i == 0 else vr(acc(t), 16)
                if ori == 'T':
                    a(f"v_mfma_f32_32x32x16_bf16 {vr(acc(t),16)}, {vr(WF[b][t],4)}, {vr(XF[b],4)}, {cc}")
                else:
                    a(f"v_mfma_f32_32x32x16_bf16 {vr(acc(t),16)}, {vr(XF[b],4)}, {vr(WF[b][t],4)}, {cc}")
        st()
        vA, vB = 24, 25
        PK = 28
        vL32, vH = 26, 27
        BI = 40; BU = 48; TMP = list(range(112, 128))
        a(f"v_and_b32 v{vL32}, 31, v{vLane}")
        a(f"v_lshrrev_b32 v{vH}, 5, v{vLane}")
        a(f"s_lshl_b32 s44, s{sRB}, 2")
        a(f"s_add_u32 s46, s44, s{sRT}")
        a(f"v_lshlrev_b32 v{vA}, 4, v{vLane}")
        a("s_nop 7")
        def qk_store(t, wsbase, scale):
            r0 = acc(t)
            if scale:
                for r in range(16):
                    a(f"v_mul_f32 v{r0+r}, {f32hex(0.25*LOG2E)}, v{r0+r}")
            for p in range(8):
                a(f"v_cvt_pk_bf16_f32 v{PK+p}, v{r0+2*p}, v{r0+2*p+1}")
            a(f"s_lshl_b32 s47, s{sCG}, 17")
            a("s_lshl_b32 s48, s46, 10")
            a("s_add_u32 s47, s47, s48")
            a(f"s_add_u32 s47, s47, {wsbase}")
            a(f"buffer_store_dwordx4 {vr(PK,4)}, v{vA}, {sr(sWS,4)}, s47 offen {WT}")
            a("s_add_u32 s47, s47, 65536")
            a(f"buffer_store_dwordx4 {vr(PK+4,4)}, v{vA}, {sr(sWS,4)}, s47 offen {WT}")
            a("s_nop 1")
        def v_store(t):
            a(f"v_lshrrev_b32 v{vB}, 4, v{vL32}")
            a(f"v_lshlrev_b32 v{vB}, 16, v{vB}")
            a(f"v_lshl_add_u32 v{vB}, v{vH}, 8, v{vB}")
            a(f"v_and_b32 v{vT0}, 15, v{vL32}")
            a(f"v_lshl_add_u32 v{vB}, v{vT0}, 4, v{vB}")
            r0 = acc(t)
            for p in range(8):
                a(f"v_cvt_pk_bf16_f32 v{PK+p}, v{r0+2*p}, v{r0+2*p+1}")
            a(f"s_lshl_b32 s47, s{sCG}, 17")
            a("s_lshl_b32 s48, s46, 10")
            a("s_add_u32 s47, s47, s48")
            a(f"s_add_u32 s47, s47, {WS_V}")
            a(f"buffer_store_dwordx4 {vr(PK,4)}, v{vB}, {sr(sWS,4)}, s47 offen {WT}")
            a(f"buffer_store_dwordx4 {vr(PK+4,4)}, v{vB}, {sr(sWS,4)}, s47 offen offset:512 {WT}")
            a("s_nop 1")
        def h_store(t, hti):
            a(f"s_add_u32 s47, s{sHC}, {32*hti}")
            a("s_lshl_b32 s49, s47, 1")
            a(f"v_lshlrev_b32 v{vT0}, 3, v{vH}")
            for g in range(4):
                a(f"buffer_load_dwordx2 {vr(BI+2*g,2)}, v{vT0}, {sr(sB1,4)}, s49 offen offset:{16*g}")
            a("s_waitcnt vmcnt(0)")
            for g in range(4):
                for d in range(2):
                    a(f"v_lshlrev_b32 v{BU+4*g+2*d}, 16, v{BI+2*g+d}")
                    a(f"v_and_b32 v{BU+4*g+2*d+1}, 0xffff0000, v{BI+2*g+d}")
            r0 = acc(t)
            for hf in range(2):
                mish_block(a, [r0 + 8*hf + i for i in range(8)], [BU + 8*hf + i for i in range(8)], TMP)
            for p in range(8):
                a(f"v_cvt_pk_bf16_f32 v{PK+p}, v{r0+2*p}, v{r0+2*p+1}")
            a("s_mul_i32 s48, s46, 86")
            a("s_lshr_b32 s49, s47, 4")
            a("s_add_u32 s48, s48, s49")
            a("s_lshl_b32 s48, s48, 10")
            a(f"s_add_u32 s48, s48, {WS_ACT}")
            a(f"buffer_store_dwordx4 {vr(PK,4)}, v{vA}, {sr(sWS,4)}, s48 offen")
            a(f"buffer_store_dwordx4 {vr(PK+4,4)}, v{vA}, {sr(sWS,4)}, s48 offen offset:1024")
            a("s_nop 1")
        if nh == 0:
            qk_store(0, WS_Q, True)
            qk_store(1, WS_K, False)
            h_store(2, 0)
        else:
            v_store(0)
            h_store(1, 1)
            a(f"s_cmp_ge_u32 s{sCG}, 11")
            a(f"s_cbranch_scc1 K1_SKIP2")
            h_store(2, 2)
            a.lab("K1_SKIP2")
        st()
        if STAMP: a("s_waitcnt vmcnt(0)")
        st()
        st.dump(sWS, sW, 12)
        a("s_endpgm")
    mainloop(0)
    a.lab("K1_NH1")
    mainloop(1)

    a.lab("K1_LOADER")
    sL = 42
    a(f"s_sub_u32 s{sL}, s{sW}, 8")
    vXo = 6; vWq = [7, 8, 9]; vW1 = [10, 11, 12]; vXo2 = 13
    a(f"v_lshrrev_b32 v{vT0}, 3, v{vLane}")
    a(f"v_and_b32 v{vT1}, 7, v{vLane}")
    a(f"v_lshrrev_b32 v{vT2}, 1, v{vT0}")
    a(f"v_xor_b32 v{vT3}, v{vT1}, v{vT2}")
    a(f"s_lshl_b32 s44, s{sRB}, 7")
    a(f"s_lshl_b32 s45, s{sL}, 5")
    a("s_add_u32 s44, s44, s45")
    a(f"v_add_u32 v{vT0}, s44, v{vT0}")
    a(f"v_lshlrev_b32 v{vT0}, 10, v{vT0}")
    a(f"v_lshl_add_u32 v{vXo}, v{vT3}, 4, v{vT0}")
    a(f"v_xor_b32 v{vT3}, 4, v{vT3}")
    a(f"v_lshl_add_u32 v{vXo2}, v{vT3}, 4, v{vT0}")
    for j in range(3):
        a(f"v_add_u32 v{vT0}, {j*64}, v{vLane}")
        a(f"v_mul_u32_u24 v{vT1}, 43691, v{vT0}")
        a(f"v_lshrrev_b32 v{vT1}, 19, v{vT1}")
        a(f"v_mul_u32_u24 v{vT2}, 12, v{vT1}")
        a(f"v_sub_u32 v{vT2}, v{vT0}, v{vT2}")
        a(f"s_lshl_b32 s44, s{sL}, 4")
        a(f"v_add_u32 v{vT1}, s44, v{vT1}")
        a(f"v_mul_u32_u24 v{vT3}, 3072, v{vT1}")
        a(f"v_lshrrev_b32 v{vT0}, 2, v{vT2}")
        a(f"v_lshl_add_u32 v{vT3}, v{vT0}, 10, v{vT3}")
        a(f"v_and_b32 v{vT0}, 3, v{vT2}")
        a(f"v_lshl_add_u32 v{vT3}, v{vT0}, 4, v{vT3}")
        a(f"s_lshl_b32 s44, s{sCG}, 6")
        a(f"v_add_u32 v{vWq[j]}, s44, v{vT3}")
        a(f"v_mul_u32_u24 v{vT3}, 2752, v{vT1}")
        a(f"v_lshl_add_u32 v{vT3}, v{vT2}, 4, v{vT3}")
        a(f"s_lshl_b32 s44, s{sHC}, 1")
        a(f"v_add_u32 v{vW1[j]}, s44, v{vT3}")
    sXd, sWd = 43, 50
    a(f"s_lshl_b32 s{sXd}, s{sL}, 12")
    a(f"s_mul_i32 s{sWd}, s{sL}, 3072")
    def dma_stage(s):
        base = (s % NBUF) * STG
        for j in range(4):
            a(f"s_add_u32 m0, s{sXd}, {base + XO + j*1024}")
            a(f"s_mov_b32 s44, {j*8192 + s*128}")
            a(f"buffer_load_dwordx4 v{vXo if j%2==0 else vXo2}, {sr(sX,4)}, s44 offen lds")
        for j in range(3):
            a(f"s_add_u32 m0, s{sWd}, {base + WQO + j*1024}")
            a(f"s_mov_b32 s44, {s*64*3072}")
            a(f"buffer_load_dwordx4 v{vWq[j]}, {sr(sWQ,4)}, s44 offen lds")
        for j in range(3):
            a(f"s_add_u32 m0, s{sWd}, {base + W1O + j*1024}")
            a(f"s_mov_b32 s44, {s*64*2752}")
            a(f"buffer_load_dwordx4 v{vW1[j]}, {sr(sW1,4)}, s44 offen lds")
    dma_stage(0)
    for s in range(NST):
        if s + 1 < NST:
            dma_stage(s + 1)
            a("s_waitcnt vmcnt(10)")
        else:
            a("s_waitcnt vmcnt(0)")
        a("s_barrier")
    a("s_lshl_b32 s44, s2, 2")
    a(f"s_add_u32 s44, s44, s{sL}")
    a(f"v_lshrrev_b32 v{vT0}, 5, v{vLane}")
    a(f"v_lshlrev_b32 v{vT0}, 12, v{vT0}")
    a(f"v_and_b32 v{vT1}, 31, v{vLane}")
    a(f"v_lshl_add_u32 v{vT0}, v{vT1}, 1, v{vT0}")
    a(f"v_lshlrev_b32 v{vT2}, 4, v{vLane}")
    a.lab("K1_TRLOOP")
    a("s_lshr_b32 s45, s44, 4")
    a("s_and_b32 s46, s44, 15")
    a("s_lshl_b32 s45, s45, 14")
    a("s_lshl_b32 s46, s46, 6")
    a("s_add_u32 s45, s45, s46")
    for j in range(8):
        ro = j if j < 4 else 8 + j - 4
        a(f"s_add_u32 s46, s45, {ro*1024}")
        a(f"buffer_load_ushort v{16+j}, v{vT0}, {sr(sW2,4)}, s46 offen")
    a("s_waitcnt vmcnt(0)")
    for p in range(4):
        a(f"v_lshl_or_b32 v{24+p}, v{16+2*p+1}, 16, v{16+2*p}")
    a("s_lshl_b32 s46, s44, 10")
    a(f"s_add_u32 s46, s46, {WS_W2T}")
    a(f"buffer_store_dwordx4 v[24:27], v{vT2}, {sr(sWS,4)}, s46 offen {WT}")
    a("s_add_u32 s44, s44, 1024")
    a("s_cmp_lt_u32 s44, 1376")
    a("s_cbranch_scc1 K1_TRLOOP")
    a("s_cmp_ge_u32 s44, 1888")
    a("s_cbranch_scc1 K1_TRDONE")
    a("s_sub_u32 s44, s44, 1376")
    a("s_lshr_b32 s45, s44, 4")
    a("s_and_b32 s46, s44, 15")
    a("s_lshl_b32 s45, s45, 14")
    a("s_lshl_b32 s46, s46, 6")
    a("s_add_u32 s45, s45, s46")
    for j in range(8):
        ro = j if j < 4 else 8 + j - 4
        a(f"s_add_u32 s46, s45, {ro*1024}")
        a(f"buffer_load_ushort v{16+j}, v{vT0}, s[64:67], s46 offen")
    a("s_waitcnt vmcnt(0)")
    for p in range(4):
        a(f"v_lshl_or_b32 v{24+p}, v{16+2*p+1}, 16, v{16+2*p}")
    a("s_lshl_b32 s46, s44, 10")
    a(f"s_add_u32 s46, s46, {WS_WOT}")
    a(f"buffer_store_dwordx4 v[24:27], v{vT2}, {sr(sWS,4)}, s46 offen {WT}")
    a.lab("K1_TRDONE")
    a(f"s_cmp_lg_u32 s{sL}, 0")
    a("s_cbranch_scc1 K1_END")
    a(f"s_lshl_b32 s44, s{sRB}, 7")
    a(f"s_lshl_b32 s45, s{sCG}, 3")
    a("s_add_u32 s44, s44, s45")
    a("s_lshl_b32 s45, s44, 10")
    for i in range(8):
        a(f"s_add_u32 s46, s45, {i*1024}")
        a(f"buffer_load_dwordx4 {vr(32+4*i,4)}, v{vT2}, {sr(sX,4)}, s46 offen")
    a(f"buffer_load_dwordx4 v[64:67], v{vT2}, {sr(sGW,4)}, 0 offen")
    a("s_waitcnt vmcnt(0)")
    for r in range(4):
        a(f"v_lshlrev_b32 v{68+2*r}, 16, v{64+r}")
        a(f"v_and_b32 v{68+2*r+1}, 0xffff0000, v{64+r}")
    for i in range(8):
        for r in range(4):
            a(f"v_lshlrev_b32 v{vT0}, 16, v{32+4*i+r}")
            a(f"v_and_b32 v{vT1}, 0xffff0000, v{32+4*i+r}")
            if r == 0:
                a(f"v_mul_f32 v{80+i}, v{vT0}, v{68}")
            else:
                a(f"v_fma_f32 v{80+i}, v{vT0}, v{68+2*r}, v{80+i}")
            a(f"v_fma_f32 v{80+i}, v{vT1}, v{68+2*r+1}, v{80+i}")
    for off in (0x041F, 0x081F, 0x101F, 0x201F, 0x401F):
        for i in range(8):
            a(f"ds_swizzle_b32 v{88+i}, v{80+i} offset:{off}")
        a("s_waitcnt lgkmcnt(0)")
        for i in range(8):
            a(f"v_add_f32 v{80+i}, v{80+i}, v{88+i}")
    for i in range(8):
        a(f"v_mov_b32 v{88+i}, v{80+i}")
    a("s_nop 1")
    for i in range(8):
        a(f"v_permlane32_swap_b32 v{80+i}, v{88+i}")
    for i in range(8):
        a(f"v_add_f32 v{80+i}, v{80+i}, v{88+i}")
    for i in range(8):
        a(f"v_mul_f32 v{80+i}, {f32hex(-LOG2E)}, v{80+i}")
    for i in range(8):
        a(f"v_exp_f32 v{80+i}, v{80+i}")
    a("s_nop 0")
    for i in range(8):
        a(f"v_add_f32 v{80+i}, 1.0, v{80+i}")
    for i in range(8):
        a(f"v_rcp_f32 v{80+i}, v{80+i}")
    a("s_lshl_b32 s45, s44, 2")
    a(f"s_add_u32 s45, s45, {WS_G}")
    a(f"v_mov_b32 v{vT0}, 0")
    a("s_mov_b64 exec, 1")
    a(f"buffer_store_dwordx4 v[80:83], v{vT0}, {sr(sWS,4)}, s45 offen")
    a(f"buffer_store_dwordx4 v[84:87], v{vT0}, {sr(sWS,4)}, s45 offen offset:16")
    a.lab("K1_END")
    a("s_endpgm")
    kernel_desc(a, name, 128)

def gen_k2(a):
    name = "attn_kernel"
    kernel_header(a, name)
    sWS = 16
    sHead, sQC, sW = 20, 21, 22
    sMaskLo = 24
    sFlag = 26
    KL = 0; VL = 65536; FL = 131072; RB = 131072 + 256
    CH = [0, 4, 16, 32, 48]
    a("s_cmp_ge_u32 s2, 256")
    a("s_cbranch_scc1 K2_END")
    a("s_load_dwordx2 s[12:13], s[0:1], 80")
    a("s_and_b32 s44, s2, 7")
    a("s_lshr_b32 s45, s2, 3")
    a("s_lshl_b32 s44, s44, 2")
    a("s_and_b32 s46, s45, 3")
    a(f"s_add_u32 s{sHead}, s44, s46")
    a(f"s_lshr_b32 s{sQC}, s45, 2")
    vLane, vT0, vT1, vT2 = 1, 2, 3, 4
    a(f"v_and_b32 v{vLane}, 63, v0")
    a(f"v_lshrrev_b32 v{vT0}, 6, v0")
    a("s_nop 0")
    a(f"v_readfirstlane_b32 s{sW}, v{vT0}")
    a("s_waitcnt lgkmcnt(0)")
    srd(a, sWS, 12, WS_SIZE)
    vL16 = 5
    st = Stamps(a, 1); st()
    a(f"v_lshlrev_b32 v{vL16}, 4, v{vLane}")
    a(f"s_lshl_b32 s44, s{sHead}, 16")
    a(f"s_cmp_ge_u32 s{sW}, 8")
    a("s_cbranch_scc1 K2_GEMM")
    QF = 8
    a(f"s_lshl_b32 s47, s{sQC}, 3")
    a(f"s_add_u32 s47, s47, s{sW}")
    a("s_lshl_b32 s47, s47, 10")
    a("s_add_u32 s47, s47, s44")
    a(f"s_add_u32 s47, s47, {WS_Q}")
    a(f"buffer_load_dwordx4 {vr(QF,4)}, v{vL16}, {sr(sWS,4)}, s47 offen")
    MN = 16
    S = [32, 48]
    O = 64
    P = 80
    KF = [88, 92, 96]
    VF = [100, 104, 108, 112]
    vKa, vVa = 6, 7
    vRun = 12; vFl = 13
    a(f"v_mov_b32 v{vFl}, {FL}")
    a(f"v_mov_b32 v{vT1}, 0")
    a(f"v_lshl_add_u32 v{vT0}, v{vLane}, 2, v{vFl}")
    a(f"s_cmp_lg_u32 s{sW}, 0")
    a("s_cbranch_scc1 K2_NOZ")
    a(f"ds_write_b32 v{vT0}, v{vT1}")
    a("s_waitcnt lgkmcnt(0)")
    a.lab("K2_NOZ")
    a("s_barrier")
    a(f"v_and_b32 v{vT0}, 31, v{vLane}")
    a(f"v_mov_b32 v{vT2}, 0x3f803f80")
    a(f"v_and_b32 v14, 27, v{vT0}")
    a("v_cmp_eq_u32 vcc, 16, v14")
    a("s_nop 1")
    a(f"v_cndmask_b32 v{vT1}, v{vT1}, v{vT2}, vcc")
    for b in VF:
        for r in range(4):
            a(f"v_mov_b32 v{b+r}, v{vT1}")
    a(f"v_cmp_gt_u32 vcc, 16, v{vT0}")
    a("s_nop 1")
    a(f"s_mov_b64 {sr(sMaskLo,2)}, vcc")
    a(f"v_mov_b32 v{vKa}, v{vL16}")
    a(f"v_lshrrev_b32 v{vT1}, 5, v{vLane}")
    a(f"v_lshlrev_b32 v{vT1}, 8, v{vT1}")
    a(f"v_and_b32 v{vT2}, 15, v{vLane}")
    a(f"v_lshl_add_u32 v{vVa}, v{vT2}, 4, v{vT1}")
    a(f"v_add_u32 v{vVa}, {VL}, v{vVa}")
    lc = [0]
    def wait_chunk(c):
        lc[0] += 1
        lb = f"K2_WC{lc[0]}"
        a.lab(lb)
        a(f"ds_read_b32 v{vT0}, v{vFl} offset:{4*c}")
        a("s_waitcnt lgkmcnt(0)")
        a(f"v_readfirstlane_b32 s47, v{vT0}")
        a("s_nop 3")
        a("s_cmp_ge_u32 s47, 4")
        a(f"s_cbranch_scc1 {lb}D")
        a("s_sleep 2")
        a(f"s_branch {lb}")
        a.lab(lb + "D")
    st()
    wait_chunk(0)
    a("s_waitcnt vmcnt(0)")
    st()
    a(f"ds_read_b128 {vr(KF[0],4)}, v{vKa}")
    a("s_waitcnt lgkmcnt(0)")
    a(f"v_mfma_f32_32x32x16_bf16 {vr(S[0],16)}, {vr(KF[0],4)}, {vr(QF,4)}, 0")
    a("s_nop 15")
    a(f"v_max3_f32 v{vRun}, v{S[0]}, v{S[0]+1}, v{S[0]+2}")
    for r in range(3, 15, 2):
        a(f"v_max3_f32 v{vRun}, v{vRun}, v{S[0]+r}, v{S[0]+r+1}")
    a(f"v_max_f32 v{vRun}, v{vRun}, v{S[0]+15}")
    a(f"v_mov_b32 v{vT1}, v{vRun}")
    a("s_nop 1")
    a(f"v_permlane32_swap_b32 v{vRun}, v{vT1}")
    a(f"v_max_f32 v{vRun}, v{vRun}, v{vT1}")
    a(f"v_sub_f32 v{vRun}, 0, v{vRun}")
    for r in range(16):
        a(f"v_mov_b32 v{MN+r}, v{vRun}")
    a(f"s_mov_b32 s{sFlag}, 0")
    st()
    NT = 64
    a.lab("K2_PASS2")
    def rdK(t):
        a(f"ds_read_b128 {vr(KF[t%3],4)}, v{vKa} offset:{t*1024}")
    def rdV(t):
        a(f"s_mov_b64 exec, {sr(sMaskLo,2)}")
        for g in range(2):
            a(f"ds_read_b128 {vr(VF[(t%2)*2+g],4)}, v{vVa} offset:{(2*t+g)*512}")
        a("s_mov_b64 exec, -1")
    rdK(0); rdK(1); rdV(0)
    a("s_waitcnt lgkmcnt(0)")
    a(f"v_mfma_f32_32x32x16_bf16 {vr(S[0],16)}, {vr(KF[0],4)}, {vr(QF,4)}, {vr(MN,16)}")
    a("s_nop 7")
    for t in range(NT):
        sb = S[t % 2]
        if (t + 2) in CH[1:]:
            wait_chunk(CH.index(t + 2))
        if t + 2 < NT: rdK(t + 2)
        if t + 1 < NT: rdV(t + 1)
        nout = (1 if t + 2 < NT else 0) + (2 if t + 1 < NT else 0)
        a(f"s_waitcnt lgkmcnt({nout})")
        if t + 1 < NT:
            a(f"v_mfma_f32_32x32x16_bf16 {vr(S[(t+1)%2],16)}, {vr(KF[(t+1)%3],4)}, {vr(QF,4)}, {vr(MN,16)}")
        for g in range(2):
            for r in range(8):
                a(f"v_exp_f32 v{sb+8*g+r}, v{sb+8*g+r}")
            for p in range(4):
                a(f"v_cvt_pk_bf16_f32 v{P+4*g+p}, v{sb+8*g+2*p}, v{sb+8*g+2*p+1}")
            a("s_nop 1")
            cc = "0" if (t == 0 and g == 0) else vr(O, 16)
            a(f"v_mfma_f32_32x32x16_bf16 {vr(O,16)}, {vr(VF[(t%2)*2+g],4)}, {vr(P+4*g,4)}, {cc}")
    a("s_nop 15")
    a(f"s_cmp_eq_u32 s{sFlag}, 1")
    a("s_cbranch_scc1 K2_EPI")
    a(f"v_cmp_ngt_f32 vcc, {f32hex(2.0**60)}, v{O+8}")
    a("s_nop 4")
    a("s_cmp_eq_u64 vcc, 0")
    a("s_cbranch_scc1 K2_EPI")
    a(f"v_mov_b32 v{vRun}, 0xff800000")
    a("s_mov_b32 s47, 0")
    a(f"v_mov_b32 v{vT0}, v{vKa}")
    a.lab("K2_P1LOOP")
    a(f"ds_read_b128 {vr(KF[0],4)}, v{vT0}")
    a("s_waitcnt lgkmcnt(0)")
    a(f"v_mfma_f32_32x32x16_bf16 {vr(S[0],16)}, {vr(KF[0],4)}, {vr(QF,4)}, 0")
    a("s_nop 15")
    for r in range(0, 16, 2):
        a(f"v_max3_f32 v{vRun}, v{vRun}, v{S[0]+r}, v{S[0]+r+1}")
    a(f"v_add_u32 v{vT0}, 1024, v{vT0}")
    a("s_add_u32 s47, s47, 1")
    a("s_cmp_lt_u32 s47, 64")
    a("s_cbranch_scc1 K2_P1LOOP")
    a(f"v_mov_b32 v{vT1}, v{vRun}")
    a("s_nop 1")
    a(f"v_permlane32_swap_b32 v{vRun}, v{vT1}")
    a(f"v_max_f32 v{vRun}, v{vRun}, v{vT1}")
    a(f"v_sub_f32 v{vRun}, 0, v{vRun}")
    for r in range(16):
        a(f"v_mov_b32 v{MN+r}, v{vRun}")
    a(f"s_mov_b32 s{sFlag}, 1")
    a("s_branch K2_PASS2")
    a.lab("K2_EPI")
    st()
    a(f"v_rcp_f32 v{vT0}, v{O+8}")
    a("s_nop 0")
    for r in range(8):
        a(f"v_mul_f32 v{O+r}, v{O+r}, v{vT0}")
    for p in range(4):
        a(f"v_cvt_pk_bf16_f32 v{P+p}, v{O+2*p}, v{O+2*p+1}")
    a(f"s_lshl_b32 s47, s{sQC}, 3")
    a(f"s_add_u32 s47, s47, s{sW}")
    a("s_lshl_b32 s47, s47, 5")
    a(f"s_add_u32 s47, s47, s{sHead}")
    a("s_lshl_b32 s47, s47, 10")
    a(f"s_add_u32 s47, s47, {WS_O}")
    a(f"buffer_store_dwordx4 {vr(P,4)}, v{vL16}, {sr(sWS,4)}, s47 offen")
    if STAMP: a("s_waitcnt vmcnt(0)")
    st()
    st.dump(sWS, sW, 12)
    a("s_endpgm")

    a.lab("K2_GEMM")
    sL = 23
    a(f"s_sub_u32 s{sL}, s{sW}, 8")
    vFl = 6; vOne = 7
    a(f"v_mov_b32 v{vFl}, {FL}")
    a(f"v_mov_b32 v{vOne}, 1")
    a(f"s_lshl_b32 s45, s{sL}, 10")
    a("s_add_u32 s46, s44, s45")
    def issue_chunk(c):
        t0 = CH[c]; t1 = CH[c + 1] if c + 1 < len(CH) else 64
        for (wsb, ldsb) in ((WS_K, KL), (WS_V, VL)):
            for i in range((t1 - t0) // 4):
                a(f"s_add_u32 m0, s45, {ldsb + t0*1024 + i*4096}")
                a(f"s_add_u32 s47, s46, {wsb + t0*1024 + i*4096}")
                a(f"buffer_load_dwordx4 v{vL16}, {sr(sWS,4)}, s47 offen lds")
        return (t1 - t0) // 2
    def signal(c):
        a("s_mov_b64 exec, 1")
        a(f"ds_add_u32 v{vFl}, v{vOne} offset:{4*c}")
        a("s_mov_b64 exec, -1")
    a("s_barrier")
    st.n = 1
    issue_chunk(0)
    for c in range(1, len(CH)):
        n = issue_chunk(c)
        a(f"s_waitcnt vmcnt({n})"); signal(c - 1)
    a("s_waitcnt vmcnt(0)"); signal(len(CH) - 1)
    st()
    ACC = 64
    FR = [8, 24, 40]
    sA, sB = 27, 28
    a(f"s_mul_i32 s47, s{sL}, 21")
    a(f"s_lshl_b32 s48, s{sHead}, 1")
    a("s_mul_i32 s48, s48, 86")
    a("s_add_u32 s48, s48, s47")
    a("s_lshl_b32 s48, s48, 10")
    a(f"s_add_u32 s{sA}, s48, {WS_ACT}")
    a("s_lshl_b32 s48, s47, 4")
    a(f"s_lshl_b32 s49, s{sQC}, 1")
    a("s_add_u32 s48, s48, s49")
    a("s_lshl_b32 s48, s48, 10")
    a(f"s_add_u32 s{sB}, s48, {WS_W2T}")
    def gl(i, fr):
        a(f"s_add_u32 s47, s{sA}, {i*1024}")
        a(f"buffer_load_dwordx4 {vr(fr,4)}, v{vL16}, {sr(sWS,4)}, s47 offen")
        a(f"s_add_u32 s47, s{sA}, {i*1024 + 86*1024}")
        a(f"buffer_load_dwordx4 {vr(fr+4,4)}, v{vL16}, {sr(sWS,4)}, s47 offen")
        a(f"s_add_u32 s47, s{sB}, {i*16384}")
        a(f"buffer_load_dwordx4 {vr(fr+8,4)}, v{vL16}, {sr(sWS,4)}, s47 offen")
        a(f"buffer_load_dwordx4 {vr(fr+12,4)}, v{vL16}, {sr(sWS,4)}, s47 offen offset:1024")
    def mm(fr, first):
        for aa in range(2):
            for bb in range(2):
                d = ACC + (aa * 2 + bb) * 16
                cc = "0" if first else vr(d, 16)
                a(f"v_mfma_f32_32x32x16_bf16 {vr(d,16)}, {vr(fr+8+4*bb,4)}, {vr(fr+4*aa,4)}, {cc}")
    NK = 21
    gl(0, FR[0]); gl(1, FR[1])
    for i in range(NK):
        if i + 2 < NK:
            gl(i + 2, FR[(i + 2) % 3])
            a("s_waitcnt vmcnt(8)")
        elif i + 1 < NK:
            a("s_waitcnt vmcnt(4)")
        else:
            a("s_waitcnt vmcnt(0)")
        mm(FR[i % 3], i == 0)
    a(f"s_cmp_ge_u32 s{sL}, 2")
    a("s_cbranch_scc1 K2_NOX")
    a(f"s_mul_i32 s48, s{sL}, 20")
    a("s_sub_u32 s48, 84, s48")
    a("s_lshl_b32 s49, s48, 10")
    a(f"s_add_u32 s{sA}, s{sA}, s49")
    a("s_lshl_b32 s49, s48, 14")
    a(f"s_add_u32 s{sB}, s{sB}, s49")
    gl(0, FR[0])
    a("s_waitcnt vmcnt(0)")
    mm(FR[0], False)
    a.lab("K2_NOX")
    a("s_nop 15")
    st()
    vRa = 8
    a(f"v_add_u32 v{vRa}, {RB}, v{vL16}")
    a(f"s_cmp_eq_u32 s{sL}, 3")
    a("s_cbranch_scc1 K2_RW")
    a(f"s_sub_u32 s48, 3, s{sL}")
    a.lab("K2_RSPIN")
    a(f"ds_read_b32 v{vT0}, v{vFl} offset:32")
    a("s_waitcnt lgkmcnt(0)")
    a(f"v_readfirstlane_b32 s47, v{vT0}")
    a("s_nop 3")
    a("s_cmp_ge_u32 s47, s48")
    a("s_cbranch_scc1 K2_RGO")
    a("s_sleep 4")
    a("s_branch K2_RSPIN")
    a.lab("K2_RGO")
    for half in range(2):
        for i in range(8):
            a(f"ds_read_b128 {vr(12+4*i,4)}, v{vRa} offset:{(8*half+i)*1024}")
        a("s_waitcnt lgkmcnt(0)")
        for i in range(32):
            a(f"v_add_f32 v{ACC+32*half+i}, v{ACC+32*half+i}, v{12+i}")
    a(f"s_cmp_eq_u32 s{sL}, 0")
    a("s_cbranch_scc1 K2_RST")
    a.lab("K2_RW")
    for i in range(16):
        a(f"ds_write_b128 v{vRa}, {vr(ACC+4*i,4)} offset:{i*1024}")
    a("s_waitcnt lgkmcnt(0)")
    a("s_mov_b64 exec, 1")
    a(f"ds_add_u32 v{vFl}, v{vOne} offset:32")
    a("s_waitcnt lgkmcnt(0)")
    a("s_mov_b64 exec, -1")
    st(); st(); st()
    st.dump(sWS, sW, 12)
    a("s_endpgm")
    a.lab("K2_RST")
    st.n = 3
    for aa in range(2):
        for bb in range(2):
            a(f"s_lshl_b32 s47, s{sHead}, 1")
            a(f"s_add_u32 s47, s47, {aa}")
            a("s_lshl_b32 s47, s47, 4")
            a(f"s_lshl_b32 s48, s{sQC}, 1")
            a("s_add_u32 s47, s47, s48")
            a(f"s_add_u32 s47, s47, {bb}")
            a("s_lshl_b32 s47, s47, 11")
            a(f"s_add_u32 s47, s47, {WS_B}")
            d0 = ACC + (aa*2+bb)*16
            for p in range(8):
                a(f"v_cvt_pk_bf16_f32 v{d0+p}, v{d0+2*p}, v{d0+2*p+1}")
            for i in range(2):
                a(f"buffer_store_dwordx4 {vr(d0+4*i,4)}, v{vL16}, {sr(sWS,4)}, s47 offen offset:{i*1024} {WT}")
    st(); st(); st()
    st.dump(sWS, sW, 12)
    a.lab("K2_END")
    a("s_endpgm")
    kernel_desc(a, name, 128)

def gen_k3(a):
    name = "out_kernel"
    kernel_header(a, name)
    sWS, sOut = 16, 36
    sRB, sCB, sW, sWM, sWN = 40, 41, 42, 43, 49
    a("s_cmp_ge_u32 s2, 256")
    a("s_cbranch_scc1 K3_END")
    a("s_load_dwordx2 s[12:13], s[0:1], 64")
    a("s_load_dwordx2 s[14:15], s[0:1], 80")
    a("s_and_b32 s44, s2, 7")
    a("s_lshr_b32 s45, s2, 3")
    a("s_lshl_b32 s44, s44, 2")
    a("s_and_b32 s46, s45, 3")
    a(f"s_add_u32 s{sRB}, s44, s46")
    a(f"s_lshr_b32 s{sCB}, s45, 2")
    vLane, vT0, vT1, vL16 = 1, 2, 3, 4
    a(f"v_and_b32 v{vLane}, 63, v0")
    a(f"v_lshrrev_b32 v{vT0}, 6, v0")
    a(f"v_lshlrev_b32 v{vL16}, 4, v{vLane}")
    a(f"v_readfirstlane_b32 s{sW}, v{vT0}")
    a("s_waitcnt lgkmcnt(0)")
    srd(a, sWS, 14, WS_SIZE)
    srd(a, sOut, 12, 2048 * 512 * 2)
    st = Stamps(a, 2); st()
    a(f"s_lshr_b32 s{sWM}, s{sW}, 1")
    a(f"s_and_b32 s{sWN}, s{sW}, 1")
    FR = 96
    ACC = 32
    BB = 8
    vTok = 5; vG = 6
    a(f"s_lshl_b32 s44, s{sRB}, 6")
    a(f"s_lshl_b32 s45, s{sW}, 3")
    a("s_add_u32 s44, s44, s45")
    a("s_lshl_b32 s44, s44, 10")
    a(f"s_add_u32 s44, s44, {WS_O}")
    a(f"s_lshl_b32 s45, s{sW}, 7")
    a(f"s_lshl_b32 s46, s{sCB}, 1")
    a("s_add_u32 s45, s45, s46")
    a("s_lshl_b32 s45, s45, 10")
    a(f"s_add_u32 s45, s45, {WS_WOT}")
    for i in range(8):
        fr = FR + 16 * i
        a(f"s_add_u32 s46, s44, {i*1024}")
        a(f"buffer_load_dwordx4 {vr(fr,4)}, v{vL16}, {sr(sWS,4)}, s46 offen")
        a(f"s_add_u32 s46, s44, {i*1024 + 32768}")
        a(f"buffer_load_dwordx4 {vr(fr+4,4)}, v{vL16}, {sr(sWS,4)}, s46 offen")
        a(f"s_add_u32 s46, s45, {i*16384}")
        a(f"buffer_load_dwordx4 {vr(fr+8,4)}, v{vL16}, {sr(sWS,4)}, s46 offen")
        a(f"buffer_load_dwordx4 {vr(fr+12,4)}, v{vL16}, {sr(sWS,4)}, s46 offen offset:1024")
    a(f"v_and_b32 v{vT0}, 31, v{vLane}")
    a(f"s_lshl_b32 s44, s{sRB}, 6")
    a(f"s_lshl_b32 s45, s{sWM}, 5")
    a("s_add_u32 s44, s44, s45")
    a(f"v_add_u32 v{vTok}, s44, v{vT0}")
    a(f"v_lshlrev_b32 v{vT0}, 2, v{vTok}")
    a(f"s_mov_b32 s44, {WS_G}")
    a(f"buffer_load_dword v{vG}, v{vT0}, {sr(sWS,4)}, s44 offen")
    a(f"s_lshl_b32 s47, s{sRB}, 1")
    a(f"s_add_u32 s47, s47, s{sWM}")
    a("s_lshl_b32 s47, s47, 4")
    a(f"s_lshl_b32 s48, s{sCB}, 1")
    a("s_add_u32 s47, s47, s48")
    a(f"s_add_u32 s47, s47, s{sWN}")
    a("s_lshl_b32 s47, s47, 11")
    a(f"s_add_u32 s47, s47, {WS_B}")
    for i in range(2):
        a(f"buffer_load_dwordx4 {vr(BB+8+4*i,4)}, v{vL16}, {sr(sWS,4)}, s47 offen offset:{i*1024}")
    st()
    for i in range(8):
        fr = FR + 16 * i
        a(f"s_waitcnt vmcnt({3 + 4*(7-i)})")
        if i == 0: st()
        for aa in range(2):
            for bb in range(2):
                d = ACC + (aa * 2 + bb) * 16
                cc = "0" if i == 0 else vr(d, 16)
                a(f"v_mfma_f32_32x32x16_bf16 {vr(d,16)}, {vr(fr+8+4*bb,4)}, {vr(fr+4*aa,4)}, {cc}")
    st()
    a(f"s_lshl_b32 s44, s{sW}, 12")
    a(f"v_add_u32 v{vT0}, s44, v{vL16}")
    a("s_nop 15")
    for own in range(4):
        a(f"s_cmp_eq_u32 s{sW}, {own}")
        a(f"s_cbranch_scc1 K3_SK{own}")
        for i in range(4):
            a(f"ds_write_b128 v{vT0}, {vr(ACC+16*own+4*i,4)} offset:{own*16384 + i*1024}")
        a.lab(f"K3_SK{own}")
    for own in range(4):
        a(f"s_cmp_lg_u32 s{sW}, {own}")
        a(f"s_cbranch_scc1 K3_MV{own}")
        for r in range(16):
            a(f"v_mov_b32 v{FR+r}, v{ACC+16*own+r}")
        a.lab(f"K3_MV{own}")
    a("s_waitcnt lgkmcnt(0)")
    a("s_barrier")
    a(f"s_lshl_b32 s44, s{sW}, 14")
    a(f"v_add_u32 v{vT0}, s44, v{vL16}")
    for src in range(4):
        for i in range(4):
            a(f"ds_read_b128 {vr(ACC+16*src+4*i,4)}, v{vT0} offset:{src*4096 + i*1024}")
    a("s_waitcnt vmcnt(0)")
    for p in range(8):
        a(f"v_lshlrev_b32 v{BB+2*p}, 16, v{BB+8+p}")
        a(f"v_and_b32 v{BB+2*p+1}, 0xffff0000, v{BB+8+p}")
    a("s_waitcnt lgkmcnt(0)")
    for src in range(4):
        a(f"s_cmp_eq_u32 s{sW}, {src}")
        a(f"s_cbranch_scc1 K3_AD{src}")
        for r in range(16):
            a(f"v_add_f32 v{FR+r}, v{FR+r}, v{ACC+16*src+r}")
        a.lab(f"K3_AD{src}")
    for r in range(16):
        a(f"v_sub_f32 v{FR+r}, v{FR+r}, v{BB+r}")
    for r in range(16):
        a(f"v_fma_f32 v{FR+r}, v{vG}, v{FR+r}, v{BB+r}")
    for p in range(8):
        a(f"v_cvt_pk_bf16_f32 v{BB+p}, v{FR+2*p}, v{FR+2*p+1}")
    a("s_nop 1")
    a(f"v_permlane32_swap_b32 v{BB}, v{BB+2}")
    a(f"v_permlane32_swap_b32 v{BB+1}, v{BB+3}")
    a(f"v_permlane32_swap_b32 v{BB+4}, v{BB+6}")
    a(f"v_permlane32_swap_b32 v{BB+5}, v{BB+7}")
    a(f"v_lshlrev_b32 v{vT0}, 10, v{vTok}")
    a(f"v_lshrrev_b32 v{vT1}, 5, v{vLane}")
    a(f"v_lshl_add_u32 v{vT0}, v{vT1}, 4, v{vT0}")
    a(f"s_lshl_b32 s44, s{sCB}, 7")
    a(f"s_lshl_b32 s45, s{sWN}, 6")
    a("s_add_u32 s44, s44, s45")
    a(f"buffer_store_dwordx4 {vr(BB,4)}, v{vT0}, {sr(sOut,4)}, s44 offen")
    a(f"buffer_store_dwordx4 {vr(BB+4,4)}, v{vT0}, {sr(sOut,4)}, s44 offen offset:32")
    st()
    if STAMP: a("s_waitcnt vmcnt(0)")
    st()
    st.dump(sWS, sW, 4)
    a.lab("K3_END")
    a("s_endpgm")
    kernel_desc(a, name, 224)

def main():
    a = A()
    hdr = open(f"cdna_kernels/{NAME}.s.ref").read().splitlines()
    for ln in hdr:
        if ln.startswith("; @launch") or ln.startswith("; Override") or ln.startswith("; grid=ceil"):
            continue
        if not ln.startswith(";"):
            break
        a.raw(ln)
    a.raw("; @launch kernel=proj_kernel grid=(256,1,1) block=(768,1,1) lds=122880")
    a.raw("; @launch kernel=attn_kernel grid=(256,1,1) block=(768,1,1) lds=147712")
    a.raw("; @launch kernel=out_kernel grid=(256,1,1) block=(256,1,1) lds=65536")
    a.raw('.amdgcn_target "amdgcn-amd-amdhsa--gfx950"')
    gen_k1(a)
    gen_k2(a)
    gen_k3(a)
    out = sys.argv[1] if len(sys.argv) > 1 else f"cdna_kernels/{NAME}.s"
    open(out, "w").write("\n".join(a.l) + "\n")
main()
```

```python
import sys
NAME = "gated_mix__softmax_full_mha__dense_activation_mish__prompt"

WS_Q = 0
WS_K = 2 << 20
WS_V = 4 << 20
WS_ACT = 6 << 20
WS_O = 12 << 20
WS_G = 14 << 20
WS_B = 16 << 20
WS_W2T = 20 << 20
WS_WOT = 22 << 20
WS_SIZE = 268435456
LOG2E = 1.4426950408889634

import struct
def f32hex(x):
    return "0x%08x" % struct.unpack("<I", struct.pack("<f", x))[0]

import os
STFLAGS = os.environ.get("STFLAGS", "")
WT = os.environ.get("WT", "sc1")
class A:
    def __init__(self):
        self.l = []
    def __call__(self, s):
        if STFLAGS and s.startswith("buffer_store"):
            s = s + " " + STFLAGS
        self.l.append("    " + s)
    def lab(self, s):
        self.l.append(s + ":")
    def raw(self, s):
        self.l.append(s)
    def c(self, s):
        self.l.append("    ; " + s)

def vr(b, n=1):
    return f"v{b}" if n == 1 else f"v[{b}:{b+n-1}]"
def sr(b, n=1):
    return f"s{b}" if n == 1 else f"s[{b}:{b+n-1}]"

def srd(a, dst, ptr, size):
    a(f"s_mov_b32 s{dst}, s{ptr}")
    a(f"s_and_b32 s{dst+1}, s{ptr+1}, 0xffff")
    a(f"s_mov_b32 s{dst+2}, {size}")
    a(f"s_mov_b32 s{dst+3}, 0x00020000")

def kernel_header(a, name):
    a.raw(".text")
    a.raw(f".globl {name}")
    a.raw(".p2align 8")
    a.raw(f".type {name},@function")
    a.lab(name)

def kernel_desc(a, name, vgpr, sgpr=102, accum=None):
    if accum is None:
        accum = (vgpr + 3) // 4 * 4
    a.raw('.section .rodata,"a"')
    a.raw(".p2align 6")
    a.raw(f".amdhsa_kernel {name}")
    a.raw(f"  .amdhsa_next_free_vgpr {vgpr}")
    a.raw(f"  .amdhsa_next_free_sgpr {sgpr}")
    a.raw(f"  .amdhsa_accum_offset {accum}")
    a.raw("  .amdhsa_group_segment_fixed_size 0")
    a.raw("  .amdhsa_kernarg_size 88")
    a.raw("  .amdhsa_user_sgpr_count 2")
    a.raw("  .amdhsa_user_sgpr_kernarg_segment_ptr 1")
    a.raw("  .amdhsa_system_sgpr_workgroup_id_x 1")
    a.raw(".end_amdhsa_kernel")

import os
STAMP = int(os.environ.get("STAMP", "0"))
WS_DBG = 24 << 20
class Stamps:
    def __init__(self, a, kid):
        self.a = a; self.n = 0; self.kid = kid
    def __call__(self):
        if not STAMP: return
        if self.n == 0: self.a("s_memrealtime s[96:97]")
        self.a(f"s_memtime s[{70+2*self.n}:{71+2*self.n}]")
        self.n += 1
    def dump(self, sWS, sWave, nwaves):
        if not STAMP: return
        a = self.a
        a("s_memrealtime s[98:99]")
        a("s_waitcnt lgkmcnt(0)")
        a(f"s_mul_i32 s68, s2, {nwaves}")
        a(f"s_add_u32 s68, s68, s{sWave}")
        a("s_lshl_b32 s68, s68, 7")
        a(f"s_add_u32 s68, s68, {WS_DBG + self.kid * (1 << 20)}")
        a("v_mov_b32 v2, 0")
        for i in range(self.n):
            a(f"v_mov_b32 v3, s{70+2*i}")
            a(f"buffer_store_dword v3, v2, {sr(sWS,4)}, s68 offen offset:{4*i}")
        for i, sg in ((30, 96), (31, 98)):
            a(f"v_mov_b32 v3, s{sg}")
            a(f"buffer_store_dword v3, v2, {sr(sWS,4)}, s68 offen offset:{4*i}")

def mish_block(a, regs, bias, tmp):
    n = len(regs)
    t = tmp[:n]; u = tmp[n:2*n]
    for i in range(n): a(f"v_add_f32 v{regs[i]}, v{regs[i]}, v{bias[i]}")
    for i in range(n): a(f"v_mul_f32 v{t[i]}, {f32hex(LOG2E)}, v{regs[i]}")
    for i in range(n): a(f"v_min_f32 v{t[i]}, {f32hex(30.0)}, v{t[i]}")
    for i in range(n): a(f"v_exp_f32 v{t[i]}, v{t[i]}")
    a("s_nop 0")
    for i in range(n): a(f"v_add_f32 v{u[i]}, 2.0, v{t[i]}")
    for i in range(n): a(f"v_mul_f32 v{u[i]}, v{u[i]}, v{t[i]}")
    for i in range(n): a(f"v_add_f32 v{t[i]}, 2.0, v{u[i]}")
    for i in range(n): a(f"v_rcp_f32 v{t[i]}, v{t[i]}")
    a("s_nop 0")
    for i in range(n): a(f"v_mul_f32 v{u[i]}, v{u[i]}, v{t[i]}")
    for i in range(n): a(f"v_mul_f32 v{regs[i]}, v{regs[i]}, v{u[i]}")


def gen_k1(a):
    name = "proj_kernel"
    kernel_header(a, name)
    STG = 40960; XO = 0; WQO = 16384; W1O = 28672; NBUF = 3; NST = 8
    sX, sWQ, sW1, sB1, sWS, sW2, sGW = 16, 20, 24, 28, 32, 52, 56
    sRB, sCG, sW, sHC, sRT, sNH = 36, 37, 38, 39, 40, 41
    a("s_cmp_ge_u32 s2, 256")
    a("s_cbranch_scc1 K1_END")
    a("s_load_dwordx4 s[4:7], s[0:1], 0")
    a("s_load_dwordx4 s[8:11], s[0:1], 32")
    a("s_load_dwordx2 s[12:13], s[0:1], 80")
    a("s_load_dwordx4 s[60:63], s[0:1], 48")
    a("s_load_dwordx2 s[64:65], s[0:1], 16")
    a("s_and_b32 s44, s2, 7")
    a("s_lshr_b32 s45, s2, 3")
    a("s_and_b32 s46, s44, 3")
    a("s_lshl_b32 s46, s46, 2")
    a("s_and_b32 s47, s45, 3")
    a(f"s_add_u32 s{sRB}, s46, s47")
    a("s_lshr_b32 s46, s44, 2")
    a("s_lshl_b32 s46, s46, 3")
    a("s_lshr_b32 s47, s45, 2")
    a(f"s_add_u32 s{sCG}, s46, s47")
    a(f"s_mul_i32 s46, s{sCG}, 96")
    a(f"s_lshl_b32 s47, s{sCG}, 6")
    a("s_add_u32 s47, s47, 352")
    a(f"s_cmp_lt_u32 s{sCG}, 11")
    a(f"s_cselect_b32 s{sHC}, s46, s47")
    vLane, vT0, vT1, vT2, vT3 = 1, 2, 3, 4, 5
    a(f"v_and_b32 v{vLane}, 63, v0")
    a(f"v_lshrrev_b32 v{vT0}, 6, v0")
    a("s_nop 0")
    a(f"v_readfirstlane_b32 s{sW}, v{vT0}")
    a("s_waitcnt lgkmcnt(0)")
    srd(a, sX, 4, 2048 * 512 * 2)
    st = Stamps(a, 0); st()
    a(f"s_cmp_lt_u32 s{sW}, 8")
    a("s_cbranch_scc1 K1_COMP")
    sL = 42
    a(f"s_sub_u32 s{sL}, s{sW}, 8")
    vXo = 6; vWq = [7, 8, 9]; vW1 = [10, 11, 12]; vXo2 = 13
    a(f"v_lshrrev_b32 v{vT0}, 3, v{vLane}")
    a(f"v_and_b32 v{vT1}, 7, v{vLane}")
    a(f"v_lshrrev_b32 v{vT2}, 1, v{vT0}")
    a(f"v_xor_b32 v{vT3}, v{vT1}, v{vT2}")
    a(f"s_lshl_b32 s44, s{sRB}, 7")
    a(f"s_lshl_b32 s45, s{sL}, 5")
    a("s_add_u32 s44, s44, s45")
    a(f"v_add_u32 v{vT0}, s44, v{vT0}")
    a(f"v_lshlrev_b32 v{vT0}, 10, v{vT0}")
    a(f"v_lshl_add_u32 v{vXo}, v{vT3}, 4, v{vT0}")
    a(f"v_xor_b32 v{vT3}, 4, v{vT3}")
    a(f"v_lshl_add_u32 v{vXo2}, v{vT3}, 4, v{vT0}")
    sXd, sWd = 43, 50
    a(f"s_lshl_b32 s{sXd}, s{sL}, 12")
    a(f"s_mul_i32 s{sWd}, s{sL}, 3072")
    for j in range(4):
        a(f"s_add_u32 m0, s{sXd}, {XO + j*1024}")
        a(f"s_mov_b32 s44, {j*8192}")
        a(f"buffer_load_dwordx4 v{vXo if j%2==0 else vXo2}, {sr(sX,4)}, s44 offen lds")
    srd(a, sWQ, 6, 512 * 1536 * 2)
    srd(a, sW1, 8, 512 * 1376 * 2)
    for j in range(3):
        a(f"v_add_u32 v{vT0}, {j*64}, v{vLane}")
        a(f"v_mul_u32_u24 v{vT1}, 43691, v{vT0}")
        a(f"v_lshrrev_b32 v{vT1}, 19, v{vT1}")
        a(f"v_mul_u32_u24 v{vT2}, 12, v{vT1}")
        a(f"v_sub_u32 v{vT2}, v{vT0}, v{vT2}")
        a(f"s_lshl_b32 s44, s{sL}, 4")
        a(f"v_add_u32 v{vT1}, s44, v{vT1}")
        a(f"v_mul_u32_u24 v{vT3}, 3072, v{vT1}")
        a(f"v_lshrrev_b32 v{vT0}, 2, v{vT2}")
        a(f"v_lshl_add_u32 v{vT3}, v{vT0}, 10, v{vT3}")
        a(f"v_and_b32 v{vT0}, 3, v{vT2}")
        a(f"v_lshl_add_u32 v{vT3}, v{vT0}, 4, v{vT3}")
        a(f"s_lshl_b32 s44, s{sCG}, 6")
        a(f"v_add_u32 v{vWq[j]}, s44, v{vT3}")
        a(f"v_mul_u32_u24 v{vT3}, 2752, v{vT1}")
        a(f"v_lshl_add_u32 v{vT3}, v{vT2}, 4, v{vT3}")
        a(f"s_lshl_b32 s44, s{sHC}, 1")
        a(f"v_add_u32 v{vW1[j]}, s44, v{vT3}")
    def dma_stage(s):
        base = (s % NBUF) * STG
        for j in range(4 if s else 0):
            a(f"s_add_u32 m0, s{sXd}, {base + XO + j*1024}")
            a(f"s_mov_b32 s44, {j*8192 + s*128}")
            a(f"buffer_load_dwordx4 v{vXo if j%2==0 else vXo2}, {sr(sX,4)}, s44 offen lds")
        for j in range(3):
            a(f"s_add_u32 m0, s{sWd}, {base + WQO + j*1024}")
            a(f"s_mov_b32 s44, {s*64*3072}")
            a(f"buffer_load_dwordx4 v{vWq[j]}, {sr(sWQ,4)}, s44 offen lds")
        for j in range(3):
            a(f"s_add_u32 m0, s{sWd}, {base + W1O + j*1024}")
            a(f"s_mov_b32 s44, {s*64*2752}")
            a(f"buffer_load_dwordx4 v{vW1[j]}, {sr(sW1,4)}, s44 offen lds")
    dma_stage(0)
    for s in range(NST):
        if s + 1 < NST:
            dma_stage(s + 1)
            a("s_waitcnt vmcnt(10)")
        else:
            a("s_waitcnt vmcnt(0)")
        a("s_barrier")
    srd(a, sWS, 12, WS_SIZE)
    srd(a, sW2, 60, 1376 * 512 * 2)
    srd(a, sGW, 62, 512 * 2)
    srd(a, 64, 64, 512 * 512 * 2)
    a("s_lshl_b32 s44, s2, 2")
    a(f"s_add_u32 s44, s44, s{sL}")
    a(f"v_lshrrev_b32 v{vT0}, 5, v{vLane}")
    a(f"v_lshlrev_b32 v{vT0}, 12, v{vT0}")
    a(f"v_and_b32 v{vT1}, 31, v{vLane}")
    a(f"v_lshl_add_u32 v{vT0}, v{vT1}, 1, v{vT0}")
    a(f"v_lshlrev_b32 v{vT2}, 4, v{vLane}")
    a.lab("K1_TRLOOP")
    a("s_lshr_b32 s45, s44, 4")
    a("s_and_b32 s46, s44, 15")
    a("s_lshl_b32 s45, s45, 14")
    a("s_lshl_b32 s46, s46, 6")
    a("s_add_u32 s45, s45, s46")
    for j in range(8):
        ro = j if j < 4 else 8 + j - 4
        a(f"s_add_u32 s46, s45, {ro*1024}")
        a(f"buffer_load_ushort v{16+j}, v{vT0}, {sr(sW2,4)}, s46 offen")
    a("s_waitcnt vmcnt(0)")
    for p in range(4):
        a(f"v_lshl_or_b32 v{24+p}, v{16+2*p+1}, 16, v{16+2*p}")
    a("s_lshl_b32 s46, s44, 10")
    a(f"s_add_u32 s46, s46, {WS_W2T}")
    a(f"buffer_store_dwordx4 v[24:27], v{vT2}, {sr(sWS,4)}, s46 offen {WT}")
    a("s_add_u32 s44, s44, 1024")
    a("s_cmp_lt_u32 s44, 1376")
    a("s_cbranch_scc1 K1_TRLOOP")
    a("s_cmp_ge_u32 s44, 1888")
    a("s_cbranch_scc1 K1_TRDONE")
    a("s_sub_u32 s44, s44, 1376")
    a("s_lshr_b32 s45, s44, 4")
    a("s_and_b32 s46, s44, 15")
    a("s_lshl_b32 s45, s45, 14")
    a("s_lshl_b32 s46, s46, 6")
    a("s_add_u32 s45, s45, s46")
    for j in range(8):
        ro = j if j < 4 else 8 + j - 4
        a(f"s_add_u32 s46, s45, {ro*1024}")
        a(f"buffer_load_ushort v{16+j}, v{vT0}, s[64:67], s46 offen")
    a("s_waitcnt vmcnt(0)")
    for p in range(4):
        a(f"v_lshl_or_b32 v{24+p}, v{16+2*p+1}, 16, v{16+2*p}")
    a("s_lshl_b32 s46, s44, 10")
    a(f"s_add_u32 s46, s46, {WS_WOT}")
    a(f"buffer_store_dwordx4 v[24:27], v{vT2}, {sr(sWS,4)}, s46 offen {WT}")
    a.lab("K1_TRDONE")
    a(f"s_cmp_lg_u32 s{sL}, 0")
    a("s_cbranch_scc1 K1_END")
    a(f"s_lshl_b32 s44, s{sRB}, 7")
    a(f"s_lshl_b32 s45, s{sCG}, 3")
    a("s_add_u32 s44, s44, s45")
    a("s_lshl_b32 s45, s44, 10")
    for i in range(8):
        a(f"s_add_u32 s46, s45, {i*1024}")
        a(f"buffer_load_dwordx4 {vr(32+4*i,4)}, v{vT2}, {sr(sX,4)}, s46 offen")
    a(f"buffer_load_dwordx4 v[64:67], v{vT2}, {sr(sGW,4)}, 0 offen")
    a("s_waitcnt vmcnt(0)")
    for r in range(4):
        a(f"v_lshlrev_b32 v{68+2*r}, 16, v{64+r}")
        a(f"v_and_b32 v{68+2*r+1}, 0xffff0000, v{64+r}")
    for i in range(8):
        for r in range(4):
            a(f"v_lshlrev_b32 v{vT0}, 16, v{32+4*i+r}")
            a(f"v_and_b32 v{vT1}, 0xffff0000, v{32+4*i+r}")
            if r == 0:
                a(f"v_mul_f32 v{80+i}, v{vT0}, v{68}")
            else:
                a(f"v_fma_f32 v{80+i}, v{vT0}, v{68+2*r}, v{80+i}")
            a(f"v_fma_f32 v{80+i}, v{vT1}, v{68+2*r+1}, v{80+i}")
    for off in (0x041F, 0x081F, 0x101F, 0x201F, 0x401F):
        for i in range(8):
            a(f"ds_swizzle_b32 v{88+i}, v{80+i} offset:{off}")
        a("s_waitcnt lgkmcnt(0)")
        for i in range(8):
            a(f"v_add_f32 v{80+i}, v{80+i}, v{88+i}")
    for i in range(8):
        a(f"v_mov_b32 v{88+i}, v{80+i}")
    a("s_nop 1")
    for i in range(8):
        a(f"v_permlane32_swap_b32 v{80+i}, v{88+i}")
    for i in range(8):
        a(f"v_add_f32 v{80+i}, v{80+i}, v{88+i}")
    for i in range(8):
        a(f"v_mul_f32 v{80+i}, {f32hex(-LOG2E)}, v{80+i}")
    for i in range(8):
        a(f"v_exp_f32 v{80+i}, v{80+i}")
    a("s_nop 0")
    for i in range(8):
        a(f"v_add_f32 v{80+i}, 1.0, v{80+i}")
    for i in range(8):
        a(f"v_rcp_f32 v{80+i}, v{80+i}")
    a("s_lshl_b32 s45, s44, 2")
    a(f"s_add_u32 s45, s45, {WS_G}")
    a(f"v_mov_b32 v{vT0}, 0")
    a("s_mov_b64 exec, 1")
    a(f"buffer_store_dwordx4 v[80:83], v{vT0}, {sr(sWS,4)}, s45 offen")
    a(f"buffer_store_dwordx4 v[84:87], v{vT0}, {sr(sWS,4)}, s45 offen offset:16")
    a.lab("K1_END")
    a("s_endpgm")
    a.lab("K1_COMP")
    srd(a, sB1, 10, 1376 * 2)
    srd(a, sWS, 12, WS_SIZE)
    a(f"s_lshr_b32 s{sRT}, s{sW}, 1")
    a(f"s_lshr_b32 s44, s{sW}, 2")
    a(f"s_xor_b32 s44, s44, s{sW}")
    a(f"s_and_b32 s{sNH}, s44, 1")
    vXa0 = [14, 15, 16, 17]
    vWa0 = 18
    vXa = [19, 20, 21, 22]; vWa = 23
    a(f"v_and_b32 v{vT0}, 31, v{vLane}")
    a(f"v_lshrrev_b32 v{vT1}, 5, v{vLane}")
    a(f"v_lshrrev_b32 v{vT2}, 1, v{vT0}")
    a(f"v_and_b32 v{vT2}, 7, v{vT2}")
    a(f"s_lshl_b32 s44, s{sRT}, 5")
    a(f"v_add_u32 v{vT0}, s44, v{vT0}")
    a(f"v_lshlrev_b32 v{vT0}, 7, v{vT0}")
    for kk in range(4):
        a(f"v_add_u32 v{vT3}, {2*kk}, v{vT1}")
        a(f"v_xor_b32 v{vT3}, v{vT3}, v{vT2}")
        a(f"v_lshl_add_u32 v{vXa0[kk]}, v{vT3}, 4, v{vT0}")
    a(f"v_lshrrev_b32 v{vT0}, 5, v{vLane}")
    a(f"v_lshlrev_b32 v{vT0}, 3, v{vT0}")
    a(f"v_bfe_u32 v{vT1}, v{vLane}, 2, 2")
    a(f"v_add_u32 v{vT0}, v{vT0}, v{vT1}")
    a(f"v_mul_u32_u24 v{vT0}, 192, v{vT0}")
    a(f"v_bfe_u32 v{vT1}, v{vLane}, 4, 1")
    a(f"v_lshl_add_u32 v{vT0}, v{vT1}, 5, v{vT0}")
    a(f"v_and_b32 v{vT1}, 3, v{vLane}")
    a(f"v_lshl_add_u32 v{vWa0}, v{vT1}, 3, v{vT0}")

    XF = [24, 28]
    WF = [[32, 36, 40], [44, 48, 52]]
    ACC = 64
    def acc(t): return ACC + t * 16
    a(f"s_cmp_eq_u32 s{sNH}, 1")
    a("s_cbranch_scc1 K1_NH1")

    def set_stage_addr(s):
        base = (s % NBUF) * STG
        for kk in range(4):
            a(f"v_add_u32 v{vXa[kk]}, {base + XO}, v{vXa0[kk]}")
        a(f"v_add_u32 v{vWa}, {base + WQO}, v{vWa0}")

    def mainloop(nh):
        tiles = [(0, 0, 'T'), (0, 64, 'T'), (12288, 0, 'T')] if nh == 0 else [(0, 128, 'N'), (12288, 64, 'T'), (12288, 128, 'T')]
        def reads(kk, b):
            a(f"ds_read_b128 {vr(XF[b],4)}, v{vXa[kk]}")
            for t, (reg, col, _) in enumerate(tiles):
                for half in range(2):
                    a(f"ds_read_b64_tr_b16 {vr(WF[b][t]+2*half,2)}, v{vWa} offset:{reg + col + (16*kk + 4*half)*192}")
        st.n = 1
        a("s_barrier")
        st()
        set_stage_addr(0)
        reads(0, 0)
        steps = [(s, kk) for s in range(NST) for kk in range(4)]
        for i, (s, kk) in enumerate(steps):
            b = i % 2
            a("s_waitcnt lgkmcnt(0)")
            if kk == 3 and s < NST - 1:
                a("s_barrier")
                set_stage_addr(s + 1)
            if i + 1 < len(steps):
                reads(steps[i + 1][1], 1 - b)
            for t, (reg, col, ori) in enumerate(tiles):
                cc = "0" if i == 0 else vr(acc(t), 16)
                if ori == 'T':
                    a(f"v_mfma_f32_32x32x16_bf16 {vr(acc(t),16)}, {vr(WF[b][t],4)}, {vr(XF[b],4)}, {cc}")
                else:
                    a(f"v_mfma_f32_32x32x16_bf16 {vr(acc(t),16)}, {vr(XF[b],4)}, {vr(WF[b][t],4)}, {cc}")
        st()
        vA, vB = 24, 25
        PK = 28
        vL32, vH = 26, 27
        BI = 40; BU = 48; TMP = list(range(112, 128))
        a(f"v_and_b32 v{vL32}, 31, v{vLane}")
        a(f"v_lshrrev_b32 v{vH}, 5, v{vLane}")
        a(f"s_lshl_b32 s44, s{sRB}, 2")
        a(f"s_add_u32 s46, s44, s{sRT}")
        a(f"v_lshlrev_b32 v{vA}, 4, v{vLane}")
        a("s_nop 7")
        def qk_store(t, wsbase, scale):
            r0 = acc(t)
            if scale:
                for r in range(16):
                    a(f"v_mul_f32 v{r0+r}, {f32hex(0.25*LOG2E)}, v{r0+r}")
            for p in range(8):
                a(f"v_cvt_pk_bf16_f32 v{PK+p}, v{r0+2*p}, v{r0+2*p+1}")
            a(f"s_lshl_b32 s47, s{sCG}, 17")
            a("s_lshl_b32 s48, s46, 10")
            a("s_add_u32 s47, s47, s48")
            a(f"s_add_u32 s47, s47, {wsbase}")
            a(f"buffer_store_dwordx4 {vr(PK,4)}, v{vA}, {sr(sWS,4)}, s47 offen {WT}")
            a("s_add_u32 s47, s47, 65536")
            a(f"buffer_store_dwordx4 {vr(PK+4,4)}, v{vA}, {sr(sWS,4)}, s47 offen {WT}")
            a("s_nop 1")
        def v_store(t):
            a(f"v_lshrrev_b32 v{vB}, 4, v{vL32}")
            a(f"v_lshlrev_b32 v{vB}, 16, v{vB}")
            a(f"v_lshl_add_u32 v{vB}, v{vH}, 8, v{vB}")
            a(f"v_and_b32 v{vT0}, 15, v{vL32}")
            a(f"v_lshl_add_u32 v{vB}, v{vT0}, 4, v{vB}")
            r0 = acc(t)
            for p in range(8):
                a(f"v_cvt_pk_bf16_f32 v{PK+p}, v{r0+2*p}, v{r0+2*p+1}")
            a(f"s_lshl_b32 s47, s{sCG}, 17")
            a("s_lshl_b32 s48, s46, 10")
            a("s_add_u32 s47, s47, s48")
            a(f"s_add_u32 s47, s47, {WS_V}")
            a(f"buffer_store_dwordx4 {vr(PK,4)}, v{vB}, {sr(sWS,4)}, s47 offen {WT}")
            a(f"buffer_store_dwordx4 {vr(PK+4,4)}, v{vB}, {sr(sWS,4)}, s47 offen offset:512 {WT}")
            a("s_nop 1")
        def h_store(t, hti):
            a(f"s_add_u32 s47, s{sHC}, {32*hti}")
            a("s_lshl_b32 s49, s47, 1")
            a(f"v_lshlrev_b32 v{vT0}, 3, v{vH}")
            for g in range(4):
                a(f"buffer_load_dwordx2 {vr(BI+2*g,2)}, v{vT0}, {sr(sB1,4)}, s49 offen offset:{16*g}")
            a("s_waitcnt vmcnt(0)")
            for g in range(4):
                for d in range(2):
                    a(f"v_lshlrev_b32 v{BU+4*g+2*d}, 16, v{BI+2*g+d}")
                    a(f"v_and_b32 v{BU+4*g+2*d+1}, 0xffff0000, v{BI+2*g+d}")
            r0 = acc(t)
            for hf in range(2):
                mish_block(a, [r0 + 8*hf + i for i in range(8)], [BU + 8*hf + i for i in range(8)], TMP)
            for p in range(8):
                a(f"v_cvt_pk_bf16_f32 v{PK+p}, v{r0+2*p}, v{r0+2*p+1}")
            a("s_mul_i32 s48, s46, 86")
            a("s_lshr_b32 s49, s47, 4")
            a("s_add_u32 s48, s48, s49")
            a("s_lshl_b32 s48, s48, 10")
            a(f"s_add_u32 s48, s48, {WS_ACT}")
            a(f"buffer_store_dwordx4 {vr(PK,4)}, v{vA}, {sr(sWS,4)}, s48 offen")
            a(f"buffer_store_dwordx4 {vr(PK+4,4)}, v{vA}, {sr(sWS,4)}, s48 offen offset:1024")
            a("s_nop 1")
        if nh == 0:
            qk_store(0, WS_Q, True)
            qk_store(1, WS_K, False)
            h_store(2, 0)
        else:
            v_store(0)
            h_store(1, 1)
            a(f"s_cmp_ge_u32 s{sCG}, 11")
            a(f"s_cbranch_scc1 K1_SKIP2")
            h_store(2, 2)
            a.lab("K1_SKIP2")
        st()
        if STAMP: a("s_waitcnt vmcnt(0)")
        st()
        st.dump(sWS, sW, 12)
        a("s_endpgm")
    mainloop(0)
    a.lab("K1_NH1")
    mainloop(1)

    kernel_desc(a, name, 128)

def gen_k2(a):
    name = "attn_kernel"
    kernel_header(a, name)
    sWS = 16
    sHead, sQC, sW = 20, 21, 22
    sMaskLo = 24
    sFlag = 26
    KL = 0; VL = 65536; FL = 131072; RB = 131072 + 256
    CH = [0, 4, 16, 32, 48]
    a("s_cmp_ge_u32 s2, 256")
    a("s_cbranch_scc1 K2_END")
    a("s_load_dwordx2 s[12:13], s[0:1], 80")
    a("s_and_b32 s44, s2, 7")
    a("s_lshr_b32 s45, s2, 3")
    a("s_lshl_b32 s44, s44, 2")
    a("s_and_b32 s46, s45, 3")
    a(f"s_add_u32 s{sHead}, s44, s46")
    a(f"s_lshr_b32 s{sQC}, s45, 2")
    vLane, vT0, vT1, vT2 = 1, 2, 3, 4
    a(f"v_and_b32 v{vLane}, 63, v0")
    a(f"v_lshrrev_b32 v{vT0}, 6, v0")
    a("s_nop 0")
    a(f"v_readfirstlane_b32 s{sW}, v{vT0}")
    a("s_waitcnt lgkmcnt(0)")
    srd(a, sWS, 12, WS_SIZE)
    vL16 = 5
    st = Stamps(a, 1); st()
    a(f"v_lshlrev_b32 v{vL16}, 4, v{vLane}")
    a(f"s_lshl_b32 s44, s{sHead}, 16")
    a(f"s_cmp_lt_u32 s{sW}, 8")
    a("s_cbranch_scc1 K2_ATT")
    sL = 23
    a(f"s_sub_u32 s{sL}, s{sW}, 8")
    vFl = 6; vOne = 7
    a(f"v_mov_b32 v{vFl}, {FL}")
    a(f"v_mov_b32 v{vOne}, 1")
    a(f"s_lshl_b32 s45, s{sL}, 10")
    a("s_add_u32 s46, s44, s45")
    def issue_chunk(c):
        t0 = CH[c]; t1 = CH[c + 1] if c + 1 < len(CH) else 64
        for (wsb, ldsb) in ((WS_K, KL), (WS_V, VL)):
            for i in range((t1 - t0) // 4):
                a(f"s_add_u32 m0, s45, {ldsb + t0*1024 + i*4096}")
                a(f"s_add_u32 s47, s46, {wsb + t0*1024 + i*4096}")
                a(f"buffer_load_dwordx4 v{vL16}, {sr(sWS,4)}, s47 offen lds")
        return (t1 - t0) // 2
    def signal(c):
        a("s_mov_b64 exec, 1")
        a(f"ds_add_u32 v{vFl}, v{vOne} offset:{4*c}")
        a("s_mov_b64 exec, -1")
    st.n = 1
    issue_chunk(0)
    a(f"v_mov_b32 v{vT1}, 0")
    a(f"v_lshl_add_u32 v{vT0}, v{vLane}, 2, v{vFl}")
    a(f"ds_write_b32 v{vT0}, v{vT1}")
    for c in range(1, len(CH)):
        n = issue_chunk(c)
        if c == 1:
            a("s_waitcnt lgkmcnt(0)")
            a("s_barrier")
        a(f"s_waitcnt vmcnt({n})"); signal(c - 1)
    a("s_waitcnt vmcnt(0)"); signal(len(CH) - 1)
    st()
    ACC = 64
    FR = [8, 24, 40]
    sA, sB = 27, 28
    a(f"s_mul_i32 s47, s{sL}, 21")
    a(f"s_lshl_b32 s48, s{sHead}, 1")
    a("s_mul_i32 s48, s48, 86")
    a("s_add_u32 s48, s48, s47")
    a("s_lshl_b32 s48, s48, 10")
    a(f"s_add_u32 s{sA}, s48, {WS_ACT}")
    a("s_lshl_b32 s48, s47, 4")
    a(f"s_lshl_b32 s49, s{sQC}, 1")
    a("s_add_u32 s48, s48, s49")
    a("s_lshl_b32 s48, s48, 10")
    a(f"s_add_u32 s{sB}, s48, {WS_W2T}")
    def gl(i, fr):
        a(f"s_add_u32 s47, s{sA}, {i*1024}")
        a(f"buffer_load_dwordx4 {vr(fr,4)}, v{vL16}, {sr(sWS,4)}, s47 offen")
        a(f"s_add_u32 s47, s{sA}, {i*1024 + 86*1024}")
        a(f"buffer_load_dwordx4 {vr(fr+4,4)}, v{vL16}, {sr(sWS,4)}, s47 offen")
        a(f"s_add_u32 s47, s{sB}, {i*16384}")
        a(f"buffer_load_dwordx4 {vr(fr+8,4)}, v{vL16}, {sr(sWS,4)}, s47 offen")
        a(f"buffer_load_dwordx4 {vr(fr+12,4)}, v{vL16}, {sr(sWS,4)}, s47 offen offset:1024")
    def mm(fr, first):
        for aa in range(2):
            for bb in range(2):
                d = ACC + (aa * 2 + bb) * 16
                cc = "0" if first else vr(d, 16)
                a(f"v_mfma_f32_32x32x16_bf16 {vr(d,16)}, {vr(fr+8+4*bb,4)}, {vr(fr+4*aa,4)}, {cc}")
    NK = 21
    gl(0, FR[0]); gl(1, FR[1])
    for i in range(NK):
        if i + 2 < NK:
            gl(i + 2, FR[(i + 2) % 3])
            a("s_waitcnt vmcnt(8)")
        elif i + 1 < NK:
            a("s_waitcnt vmcnt(4)")
        else:
            a("s_waitcnt vmcnt(0)")
        mm(FR[i % 3], i == 0)
    a(f"s_cmp_ge_u32 s{sL}, 2")
    a("s_cbranch_scc1 K2_NOX")
    a(f"s_mul_i32 s48, s{sL}, 20")
    a("s_sub_u32 s48, 84, s48")
    a("s_lshl_b32 s49, s48, 10")
    a(f"s_add_u32 s{sA}, s{sA}, s49")
    a("s_lshl_b32 s49, s48, 14")
    a(f"s_add_u32 s{sB}, s{sB}, s49")
    gl(0, FR[0])
    a("s_waitcnt vmcnt(0)")
    mm(FR[0], False)
    a.lab("K2_NOX")
    a("s_nop 15")
    st()
    vRa = 8
    a(f"v_add_u32 v{vRa}, {RB}, v{vL16}")
    a(f"s_cmp_eq_u32 s{sL}, 3")
    a("s_cbranch_scc1 K2_RW")
    a(f"s_sub_u32 s48, 3, s{sL}")
    a.lab("K2_RSPIN")
    a(f"ds_read_b32 v{vT0}, v{vFl} offset:32")
    a("s_waitcnt lgkmcnt(0)")
    a(f"v_readfirstlane_b32 s47, v{vT0}")
    a("s_nop 3")
    a("s_cmp_ge_u32 s47, s48")
    a("s_cbranch_scc1 K2_RGO")
    a("s_sleep 4")
    a("s_branch K2_RSPIN")
    a.lab("K2_RGO")
    for half in range(2):
        for i in range(8):
            a(f"ds_read_b128 {vr(12+4*i,4)}, v{vRa} offset:{(8*half+i)*1024}")
        a("s_waitcnt lgkmcnt(0)")
        for i in range(32):
            a(f"v_add_f32 v{ACC+32*half+i}, v{ACC+32*half+i}, v{12+i}")
    a(f"s_cmp_eq_u32 s{sL}, 0")
    a("s_cbranch_scc1 K2_RST")
    a.lab("K2_RW")
    for i in range(16):
        a(f"ds_write_b128 v{vRa}, {vr(ACC+4*i,4)} offset:{i*1024}")
    a("s_waitcnt lgkmcnt(0)")
    a("s_mov_b64 exec, 1")
    a(f"ds_add_u32 v{vFl}, v{vOne} offset:32")
    a("s_waitcnt lgkmcnt(0)")
    a("s_mov_b64 exec, -1")
    st(); st(); st()
    st.dump(sWS, sW, 12)
    a("s_endpgm")
    a.lab("K2_RST")
    st.n = 3
    for aa in range(2):
        for bb in range(2):
            a(f"s_lshl_b32 s47, s{sHead}, 1")
            a(f"s_add_u32 s47, s47, {aa}")
            a("s_lshl_b32 s47, s47, 4")
            a(f"s_lshl_b32 s48, s{sQC}, 1")
            a("s_add_u32 s47, s47, s48")
            a(f"s_add_u32 s47, s47, {bb}")
            a("s_lshl_b32 s47, s47, 11")
            a(f"s_add_u32 s47, s47, {WS_B}")
            d0 = ACC + (aa*2+bb)*16
            for p in range(8):
                a(f"v_cvt_pk_bf16_f32 v{d0+p}, v{d0+2*p}, v{d0+2*p+1}")
            for i in range(2):
                a(f"buffer_store_dwordx4 {vr(d0+4*i,4)}, v{vL16}, {sr(sWS,4)}, s47 offen offset:{i*1024} {WT}")
    st(); st(); st()
    st.dump(sWS, sW, 12)
    a.lab("K2_END")
    a("s_endpgm")
    a.lab("K2_ATT")
    st.n = 1
    QF = 8
    a(f"s_lshl_b32 s47, s{sQC}, 3")
    a(f"s_add_u32 s47, s47, s{sW}")
    a("s_lshl_b32 s47, s47, 10")
    a("s_add_u32 s47, s47, s44")
    a(f"s_add_u32 s47, s47, {WS_Q}")
    a(f"buffer_load_dwordx4 {vr(QF,4)}, v{vL16}, {sr(sWS,4)}, s47 offen")
    MN = 16
    S = [32, 48]
    O = 64
    P = 80
    KF = [88, 92, 96]
    VF = [100, 104, 108, 112]
    vKa, vVa = 6, 7
    vRun = 12; vFl = 13
    a(f"v_mov_b32 v{vFl}, {FL}")
    a(f"v_mov_b32 v{vT1}, 0")
    a(f"v_and_b32 v{vT0}, 31, v{vLane}")
    a(f"v_mov_b32 v{vT2}, 0x3f803f80")
    a(f"v_and_b32 v14, 27, v{vT0}")
    a("v_cmp_eq_u32 vcc, 16, v14")
    a("s_nop 1")
    a(f"v_cndmask_b32 v{vT1}, v{vT1}, v{vT2}, vcc")
    for b in VF:
        for r in range(4):
            a(f"v_mov_b32 v{b+r}, v{vT1}")
    a(f"v_cmp_gt_u32 vcc, 16, v{vT0}")
    a("s_nop 1")
    a(f"s_mov_b64 {sr(sMaskLo,2)}, vcc")
    a(f"v_mov_b32 v{vKa}, v{vL16}")
    a(f"v_lshrrev_b32 v{vT1}, 5, v{vLane}")
    a(f"v_lshlrev_b32 v{vT1}, 8, v{vT1}")
    a(f"v_and_b32 v{vT2}, 15, v{vLane}")
    a(f"v_lshl_add_u32 v{vVa}, v{vT2}, 4, v{vT1}")
    a(f"v_add_u32 v{vVa}, {VL}, v{vVa}")
    lc = [0]
    def wait_chunk(c):
        lc[0] += 1
        lb = f"K2_WC{lc[0]}"
        a.lab(lb)
        a(f"ds_read_b32 v{vT0}, v{vFl} offset:{4*c}")
        a("s_waitcnt lgkmcnt(0)")
        a(f"v_readfirstlane_b32 s47, v{vT0}")
        a("s_nop 3")
        a("s_cmp_ge_u32 s47, 4")
        a(f"s_cbranch_scc1 {lb}D")
        a("s_sleep 2")
        a(f"s_branch {lb}")
        a.lab(lb + "D")
    a("s_barrier")
    st()
    wait_chunk(0)
    a("s_waitcnt vmcnt(0)")
    st()
    a(f"ds_read_b128 {vr(KF[0],4)}, v{vKa}")
    a("s_waitcnt lgkmcnt(0)")
    a(f"v_mfma_f32_32x32x16_bf16 {vr(S[0],16)}, {vr(KF[0],4)}, {vr(QF,4)}, 0")
    a("s_nop 15")
    a(f"v_max3_f32 v{vRun}, v{S[0]}, v{S[0]+1}, v{S[0]+2}")
    for r in range(3, 15, 2):
        a(f"v_max3_f32 v{vRun}, v{vRun}, v{S[0]+r}, v{S[0]+r+1}")
    a(f"v_max_f32 v{vRun}, v{vRun}, v{S[0]+15}")
    a(f"v_mov_b32 v{vT1}, v{vRun}")
    a("s_nop 1")
    a(f"v_permlane32_swap_b32 v{vRun}, v{vT1}")
    a(f"v_max_f32 v{vRun}, v{vRun}, v{vT1}")
    a(f"v_sub_f32 v{vRun}, 0, v{vRun}")
    for r in range(16):
        a(f"v_mov_b32 v{MN+r}, v{vRun}")
    a(f"s_mov_b32 s{sFlag}, 0")
    st()
    NT = 64
    a.lab("K2_PASS2")
    def rdK(t):
        a(f"ds_read_b128 {vr(KF[t%3],4)}, v{vKa} offset:{t*1024}")
    def rdV(t):
        a(f"s_mov_b64 exec, {sr(sMaskLo,2)}")
        for g in range(2):
            a(f"ds_read_b128 {vr(VF[(t%2)*2+g],4)}, v{vVa} offset:{(2*t+g)*512}")
        a("s_mov_b64 exec, -1")
    rdK(0); rdK(1); rdV(0)
    a("s_waitcnt lgkmcnt(0)")
    a(f"v_mfma_f32_32x32x16_bf16 {vr(S[0],16)}, {vr(KF[0],4)}, {vr(QF,4)}, {vr(MN,16)}")
    a("s_nop 7")
    for t in range(NT):
        sb = S[t % 2]
        if (t + 2) in CH[1:]:
            wait_chunk(CH.index(t + 2))
        if t + 2 < NT: rdK(t + 2)
        if t + 1 < NT: rdV(t + 1)
        nout = (1 if t + 2 < NT else 0) + (2 if t + 1 < NT else 0)
        a(f"s_waitcnt lgkmcnt({nout})")
        if t + 1 < NT:
            a(f"v_mfma_f32_32x32x16_bf16 {vr(S[(t+1)%2],16)}, {vr(KF[(t+1)%3],4)}, {vr(QF,4)}, {vr(MN,16)}")
        for g in range(2):
            for r in range(8):
                a(f"v_exp_f32 v{sb+8*g+r}, v{sb+8*g+r}")
            for p in range(4):
                a(f"v_cvt_pk_bf16_f32 v{P+4*g+p}, v{sb+8*g+2*p}, v{sb+8*g+2*p+1}")
            a("s_nop 1")
            cc = "0" if (t == 0 and g == 0) else vr(O, 16)
            a(f"v_mfma_f32_32x32x16_bf16 {vr(O,16)}, {vr(VF[(t%2)*2+g],4)}, {vr(P+4*g,4)}, {cc}")
    a("s_nop 15")
    a(f"s_cmp_eq_u32 s{sFlag}, 1")
    a("s_cbranch_scc1 K2_EPI")
    a(f"v_cmp_ngt_f32 vcc, {f32hex(2.0**60)}, v{O+8}")
    a("s_nop 4")
    a("s_cmp_eq_u64 vcc, 0")
    a("s_cbranch_scc1 K2_EPI")
    a(f"v_mov_b32 v{vRun}, 0xff800000")
    a("s_mov_b32 s47, 0")
    a(f"v_mov_b32 v{vT0}, v{vKa}")
    a.lab("K2_P1LOOP")
    a(f"ds_read_b128 {vr(KF[0],4)}, v{vT0}")
    a("s_waitcnt lgkmcnt(0)")
    a(f"v_mfma_f32_32x32x16_bf16 {vr(S[0],16)}, {vr(KF[0],4)}, {vr(QF,4)}, 0")
    a("s_nop 15")
    for r in range(0, 16, 2):
        a(f"v_max3_f32 v{vRun}, v{vRun}, v{S[0]+r}, v{S[0]+r+1}")
    a(f"v_add_u32 v{vT0}, 1024, v{vT0}")
    a("s_add_u32 s47, s47, 1")
    a("s_cmp_lt_u32 s47, 64")
    a("s_cbranch_scc1 K2_P1LOOP")
    a(f"v_mov_b32 v{vT1}, v{vRun}")
    a("s_nop 1")
    a(f"v_permlane32_swap_b32 v{vRun}, v{vT1}")
    a(f"v_max_f32 v{vRun}, v{vRun}, v{vT1}")
    a(f"v_sub_f32 v{vRun}, 0, v{vRun}")
    for r in range(16):
        a(f"v_mov_b32 v{MN+r}, v{vRun}")
    a(f"s_mov_b32 s{sFlag}, 1")
    a("s_branch K2_PASS2")
    a.lab("K2_EPI")
    st()
    a(f"v_rcp_f32 v{vT0}, v{O+8}")
    a("s_nop 0")
    for r in range(8):
        a(f"v_mul_f32 v{O+r}, v{O+r}, v{vT0}")
    for p in range(4):
        a(f"v_cvt_pk_bf16_f32 v{P+p}, v{O+2*p}, v{O+2*p+1}")
    a(f"s_lshl_b32 s47, s{sQC}, 3")
    a(f"s_add_u32 s47, s47, s{sW}")
    a("s_lshl_b32 s47, s47, 5")
    a(f"s_add_u32 s47, s47, s{sHead}")
    a("s_lshl_b32 s47, s47, 10")
    a(f"s_add_u32 s47, s47, {WS_O}")
    a(f"buffer_store_dwordx4 {vr(P,4)}, v{vL16}, {sr(sWS,4)}, s47 offen")
    if STAMP: a("s_waitcnt vmcnt(0)")
    st()
    st.dump(sWS, sW, 12)
    a("s_endpgm")

    kernel_desc(a, name, 128)

def gen_k3(a):
    name = "out_kernel"
    kernel_header(a, name)
    sWS, sOut = 16, 36
    sRB, sCB, sW, sWM, sWN = 40, 41, 42, 43, 49
    a("s_cmp_ge_u32 s2, 256")
    a("s_cbranch_scc1 K3_END")
    a("s_load_dwordx2 s[12:13], s[0:1], 64")
    a("s_load_dwordx2 s[14:15], s[0:1], 80")
    a("s_and_b32 s44, s2, 7")
    a("s_lshr_b32 s45, s2, 3")
    a("s_lshl_b32 s44, s44, 2")
    a("s_and_b32 s46, s45, 3")
    a(f"s_add_u32 s{sRB}, s44, s46")
    a(f"s_lshr_b32 s{sCB}, s45, 2")
    vLane, vT0, vT1, vL16 = 1, 2, 3, 4
    a(f"v_and_b32 v{vLane}, 63, v0")
    a(f"v_lshrrev_b32 v{vT0}, 6, v0")
    a(f"v_lshlrev_b32 v{vL16}, 4, v{vLane}")
    a(f"v_readfirstlane_b32 s{sW}, v{vT0}")
    a("s_waitcnt lgkmcnt(0)")
    srd(a, sWS, 14, WS_SIZE)
    srd(a, sOut, 12, 2048 * 512 * 2)
    st = Stamps(a, 2); st()
    a(f"s_lshr_b32 s{sWM}, s{sW}, 1")
    a(f"s_and_b32 s{sWN}, s{sW}, 1")
    FR = 96
    ACC = 32
    BB = 8
    vTok = 5; vG = 6
    a(f"s_lshl_b32 s44, s{sRB}, 6")
    a(f"s_lshl_b32 s45, s{sW}, 3")
    a("s_add_u32 s44, s44, s45")
    a("s_lshl_b32 s44, s44, 10")
    a(f"s_add_u32 s44, s44, {WS_O}")
    a(f"s_lshl_b32 s45, s{sW}, 7")
    a(f"s_lshl_b32 s46, s{sCB}, 1")
    a("s_add_u32 s45, s45, s46")
    a("s_lshl_b32 s45, s45, 10")
    a(f"s_add_u32 s45, s45, {WS_WOT}")
    for i in range(8):
        fr = FR + 16 * i
        a(f"s_add_u32 s46, s44, {i*1024}")
        a(f"buffer_load_dwordx4 {vr(fr,4)}, v{vL16}, {sr(sWS,4)}, s46 offen")
        a(f"s_add_u32 s46, s44, {i*1024 + 32768}")
        a(f"buffer_load_dwordx4 {vr(fr+4,4)}, v{vL16}, {sr(sWS,4)}, s46 offen")
        a(f"s_add_u32 s46, s45, {i*16384}")
        a(f"buffer_load_dwordx4 {vr(fr+8,4)}, v{vL16}, {sr(sWS,4)}, s46 offen")
        a(f"buffer_load_dwordx4 {vr(fr+12,4)}, v{vL16}, {sr(sWS,4)}, s46 offen offset:1024")
    a(f"v_and_b32 v{vT0}, 31, v{vLane}")
    a(f"s_lshl_b32 s44, s{sRB}, 6")
    a(f"s_lshl_b32 s45, s{sWM}, 5")
    a("s_add_u32 s44, s44, s45")
    a(f"v_add_u32 v{vTok}, s44, v{vT0}")
    a(f"v_lshlrev_b32 v{vT0}, 2, v{vTok}")
    a(f"s_mov_b32 s44, {WS_G}")
    a(f"buffer_load_dword v{vG}, v{vT0}, {sr(sWS,4)}, s44 offen")
    a(f"s_lshl_b32 s47, s{sRB}, 1")
    a(f"s_add_u32 s47, s47, s{sWM}")
    a("s_lshl_b32 s47, s47, 4")
    a(f"s_lshl_b32 s48, s{sCB}, 1")
    a("s_add_u32 s47, s47, s48")
    a(f"s_add_u32 s47, s47, s{sWN}")
    a("s_lshl_b32 s47, s47, 11")
    a(f"s_add_u32 s47, s47, {WS_B}")
    for i in range(2):
        a(f"buffer_load_dwordx4 {vr(BB+8+4*i,4)}, v{vL16}, {sr(sWS,4)}, s47 offen offset:{i*1024}")
    st()
    for i in range(8):
        fr = FR + 16 * i
        a(f"s_waitcnt vmcnt({3 + 4*(7-i)})")
        if i == 0: st()
        for aa in range(2):
            for bb in range(2):
                d = ACC + (aa * 2 + bb) * 16
                cc = "0" if i == 0 else vr(d, 16)
                a(f"v_mfma_f32_32x32x16_bf16 {vr(d,16)}, {vr(fr+8+4*bb,4)}, {vr(fr+4*aa,4)}, {cc}")
    st()
    a(f"s_lshl_b32 s44, s{sW}, 12")
    a(f"v_add_u32 v{vT0}, s44, v{vL16}")
    a("s_nop 15")
    for own in range(4):
        a(f"s_cmp_eq_u32 s{sW}, {own}")
        a(f"s_cbranch_scc1 K3_SK{own}")
        for i in range(4):
            a(f"ds_write_b128 v{vT0}, {vr(ACC+16*own+4*i,4)} offset:{own*16384 + i*1024}")
        a.lab(f"K3_SK{own}")
    for own in range(4):
        a(f"s_cmp_lg_u32 s{sW}, {own}")
        a(f"s_cbranch_scc1 K3_MV{own}")
        for r in range(16):
            a(f"v_mov_b32 v{FR+r}, v{ACC+16*own+r}")
        a.lab(f"K3_MV{own}")
    a("s_waitcnt lgkmcnt(0)")
    a("s_barrier")
    a(f"s_lshl_b32 s44, s{sW}, 14")
    a(f"v_add_u32 v{vT0}, s44, v{vL16}")
    for src in range(4):
        for i in range(4):
            a(f"ds_read_b128 {vr(ACC+16*src+4*i,4)}, v{vT0} offset:{src*4096 + i*1024}")
    a("s_waitcnt vmcnt(0)")
    for p in range(8):
        a(f"v_lshlrev_b32 v{BB+2*p}, 16, v{BB+8+p}")
        a(f"v_and_b32 v{BB+2*p+1}, 0xffff0000, v{BB+8+p}")
    a("s_waitcnt lgkmcnt(0)")
    for src in range(4):
        a(f"s_cmp_eq_u32 s{sW}, {src}")
        a(f"s_cbranch_scc1 K3_AD{src}")
        for r in range(16):
            a(f"v_add_f32 v{FR+r}, v{FR+r}, v{ACC+16*src+r}")
        a.lab(f"K3_AD{src}")
    for r in range(16):
        a(f"v_sub_f32 v{FR+r}, v{FR+r}, v{BB+r}")
    for r in range(16):
        a(f"v_fma_f32 v{FR+r}, v{vG}, v{FR+r}, v{BB+r}")
    for p in range(8):
        a(f"v_cvt_pk_bf16_f32 v{BB+p}, v{FR+2*p}, v{FR+2*p+1}")
    a("s_nop 1")
    a(f"v_permlane32_swap_b32 v{BB}, v{BB+2}")
    a(f"v_permlane32_swap_b32 v{BB+1}, v{BB+3}")
    a(f"v_permlane32_swap_b32 v{BB+4}, v{BB+6}")
    a(f"v_permlane32_swap_b32 v{BB+5}, v{BB+7}")
    a(f"v_lshlrev_b32 v{vT0}, 10, v{vTok}")
    a(f"v_lshrrev_b32 v{vT1}, 5, v{vLane}")
    a(f"v_lshl_add_u32 v{vT0}, v{vT1}, 4, v{vT0}")
    a(f"s_lshl_b32 s44, s{sCB}, 7")
    a(f"s_lshl_b32 s45, s{sWN}, 6")
    a("s_add_u32 s44, s44, s45")
    a(f"buffer_store_dwordx4 {vr(BB,4)}, v{vT0}, {sr(sOut,4)}, s44 offen")
    a(f"buffer_store_dwordx4 {vr(BB+4,4)}, v{vT0}, {sr(sOut,4)}, s44 offen offset:32")
    st()
    if STAMP: a("s_waitcnt vmcnt(0)")
    st()
    st.dump(sWS, sW, 4)
    a.lab("K3_END")
    a("s_endpgm")
    kernel_desc(a, name, 224)

def main():
    a = A()
    hdr = open(f"cdna_kernels/{NAME}.s.ref").read().splitlines()
    for ln in hdr:
        if ln.startswith("; @launch") or ln.startswith("; Override") or ln.startswith("; grid=ceil"):
            continue
        if not ln.startswith(";"):
            break
        a.raw(ln)
    a.raw("; @launch kernel=proj_kernel grid=(256,1,1) block=(768,1,1) lds=122880")
    a.raw("; @launch kernel=attn_kernel grid=(256,1,1) block=(768,1,1) lds=147712")
    a.raw("; @launch kernel=out_kernel grid=(256,1,1) block=(256,1,1) lds=65536")
    a.raw('.amdgcn_target "amdgcn-amd-amdhsa--gfx950"')
    gen_k1(a)
    gen_k2(a)
    gen_k3(a)
    out = sys.argv[1] if len(sys.argv) > 1 else f"cdna_kernels/{NAME}.s"
    open(out, "w").write("\n".join(a.l) + "\n")
main()
```

```python
import sys
NAME = "gated_mix__softmax_full_mha__dense_activation_mish__prompt"

WS_Q = 0
WS_K = 2 << 20
WS_V = 4 << 20
WS_ACT = 6 << 20
WS_O = 12 << 20
WS_G = 14 << 20
WS_B = 16 << 20
WS_W2T = 20 << 20
WS_WOT = 22 << 20
WS_SIZE = 268435456
LOG2E = 1.4426950408889634

import struct
def f32hex(x):
    return "0x%08x" % struct.unpack("<I", struct.pack("<f", x))[0]

import os
STFLAGS = os.environ.get("STFLAGS", "")
WT = os.environ.get("WT", "sc1")
ROTATE = int(os.environ.get("ROTATE", "1"))
class A:
    def __init__(self):
        self.l = []
    def __call__(self, s):
        if STFLAGS and s.startswith("buffer_store"):
            s = s + " " + STFLAGS
        self.l.append("    " + s)
    def lab(self, s):
        self.l.append(s + ":")
    def raw(self, s):
        self.l.append(s)
    def c(self, s):
        self.l.append("    ; " + s)

def vr(b, n=1):
    return f"v{b}" if n == 1 else f"v[{b}:{b+n-1}]"
def sr(b, n=1):
    return f"s{b}" if n == 1 else f"s[{b}:{b+n-1}]"

def srd(a, dst, ptr, size):
    a(f"s_mov_b32 s{dst}, s{ptr}")
    a(f"s_and_b32 s{dst+1}, s{ptr+1}, 0xffff")
    a(f"s_mov_b32 s{dst+2}, {size}")
    a(f"s_mov_b32 s{dst+3}, 0x00020000")

def kernel_header(a, name):
    a.raw(".text")
    a.raw(f".globl {name}")
    a.raw(".p2align 8")
    a.raw(f".type {name},@function")
    a.lab(name)

def kernel_desc(a, name, vgpr, sgpr=102, accum=None):
    if accum is None:
        accum = (vgpr + 3) // 4 * 4
    a.raw('.section .rodata,"a"')
    a.raw(".p2align 6")
    a.raw(f".amdhsa_kernel {name}")
    a.raw(f"  .amdhsa_next_free_vgpr {vgpr}")
    a.raw(f"  .amdhsa_next_free_sgpr {sgpr}")
    a.raw(f"  .amdhsa_accum_offset {accum}")
    a.raw("  .amdhsa_group_segment_fixed_size 0")
    a.raw("  .amdhsa_kernarg_size 88")
    a.raw("  .amdhsa_user_sgpr_count 2")
    a.raw("  .amdhsa_user_sgpr_kernarg_segment_ptr 1")
    a.raw("  .amdhsa_system_sgpr_workgroup_id_x 1")
    a.raw(".end_amdhsa_kernel")

import os
STAMP = int(os.environ.get("STAMP", "0"))
WS_DBG = 24 << 20
class Stamps:
    def __init__(self, a, kid):
        self.a = a; self.n = 0; self.kid = kid
    def __call__(self):
        if not STAMP: return
        if self.n == 0: self.a("s_memrealtime s[96:97]")
        self.a(f"s_memtime s[{70+2*self.n}:{71+2*self.n}]")
        self.n += 1
    def dump(self, sWS, sWave, nwaves):
        if not STAMP: return
        a = self.a
        a("s_memrealtime s[98:99]")
        a("s_waitcnt lgkmcnt(0)")
        a(f"s_mul_i32 s68, s2, {nwaves}")
        a(f"s_add_u32 s68, s68, s{sWave}")
        a("s_lshl_b32 s68, s68, 7")
        a(f"s_add_u32 s68, s68, {WS_DBG + self.kid * (1 << 20)}")
        a("v_mov_b32 v2, 0")
        for i in range(self.n):
            a(f"v_mov_b32 v3, s{70+2*i}")
            a(f"buffer_store_dword v3, v2, {sr(sWS,4)}, s68 offen offset:{4*i}")
        for i, sg in ((30, 96), (31, 98)):
            a(f"v_mov_b32 v3, s{sg}")
            a(f"buffer_store_dword v3, v2, {sr(sWS,4)}, s68 offen offset:{4*i}")

def mish_block(a, regs, bias, tmp):
    n = len(regs)
    t = tmp[:n]; u = tmp[n:2*n]
    for i in range(n): a(f"v_add_f32 v{regs[i]}, v{regs[i]}, v{bias[i]}")
    for i in range(n): a(f"v_mul_f32 v{t[i]}, {f32hex(LOG2E)}, v{regs[i]}")
    for i in range(n): a(f"v_min_f32 v{t[i]}, {f32hex(30.0)}, v{t[i]}")
    for i in range(n): a(f"v_exp_f32 v{t[i]}, v{t[i]}")
    a("s_nop 0")
    for i in range(n): a(f"v_add_f32 v{u[i]}, 2.0, v{t[i]}")
    for i in range(n): a(f"v_mul_f32 v{u[i]}, v{u[i]}, v{t[i]}")
    for i in range(n): a(f"v_add_f32 v{t[i]}, 2.0, v{u[i]}")
    for i in range(n): a(f"v_rcp_f32 v{t[i]}, v{t[i]}")
    a("s_nop 0")
    for i in range(n): a(f"v_mul_f32 v{u[i]}, v{u[i]}, v{t[i]}")
    for i in range(n): a(f"v_mul_f32 v{regs[i]}, v{regs[i]}, v{u[i]}")


def gen_k1(a):
    name = "proj_kernel"
    kernel_header(a, name)
    STG = 40960; XO = 0; WQO = 16384; W1O = 28672; NBUF = 3; NST = 8
    sX, sWQ, sW1, sB1, sWS, sW2, sGW = 16, 20, 24, 28, 32, 52, 56
    sRB, sCG, sW, sHC, sRT, sNH = 36, 37, 38, 39, 40, 41
    a("s_cmp_ge_u32 s2, 256")
    a("s_cbranch_scc1 K1_END")
    a("s_load_dwordx4 s[4:7], s[0:1], 0")
    a("s_load_dwordx4 s[8:11], s[0:1], 32")
    a("s_load_dwordx2 s[12:13], s[0:1], 80")
    a("s_load_dwordx4 s[60:63], s[0:1], 48")
    a("s_load_dwordx2 s[64:65], s[0:1], 16")
    a("s_and_b32 s44, s2, 7")
    a("s_lshr_b32 s45, s2, 3")
    a("s_and_b32 s46, s44, 3")
    a("s_lshl_b32 s46, s46, 2")
    a("s_and_b32 s47, s45, 3")
    a(f"s_add_u32 s{sRB}, s46, s47")
    a("s_lshr_b32 s46, s44, 2")
    a("s_lshl_b32 s46, s46, 3")
    a("s_lshr_b32 s47, s45, 2")
    a(f"s_add_u32 s{sCG}, s46, s47")
    a(f"s_mul_i32 s46, s{sCG}, 96")
    a(f"s_lshl_b32 s47, s{sCG}, 6")
    a("s_add_u32 s47, s47, 352")
    a(f"s_cmp_lt_u32 s{sCG}, 11")
    a(f"s_cselect_b32 s{sHC}, s46, s47")
    vLane, vT0, vT1, vT2, vT3 = 1, 2, 3, 4, 5
    a(f"v_and_b32 v{vLane}, 63, v0")
    a(f"v_lshrrev_b32 v{vT0}, 6, v0")
    a("s_nop 0")
    a(f"v_readfirstlane_b32 s{sW}, v{vT0}")
    a("s_waitcnt lgkmcnt(0)")
    srd(a, sX, 4, 2048 * 512 * 2)
    st = Stamps(a, 0); st()
    a(f"s_cmp_lt_u32 s{sW}, 8")
    a("s_cbranch_scc1 K1_COMP")
    sL = 42
    a(f"s_sub_u32 s{sL}, s{sW}, 8")
    vXo = 6; vWq = [7, 8, 9]; vW1 = [10, 11, 12]; vXo2 = 13
    a(f"v_lshrrev_b32 v{vT0}, 3, v{vLane}")
    a(f"v_and_b32 v{vT1}, 7, v{vLane}")
    a(f"v_lshrrev_b32 v{vT2}, 1, v{vT0}")
    a(f"v_xor_b32 v{vT3}, v{vT1}, v{vT2}")
    a(f"s_lshl_b32 s44, s{sRB}, 7")
    a(f"s_lshl_b32 s45, s{sL}, 5")
    a("s_add_u32 s44, s44, s45")
    a(f"v_add_u32 v{vT0}, s44, v{vT0}")
    a(f"v_lshlrev_b32 v{vT0}, 10, v{vT0}")
    a(f"v_lshl_add_u32 v{vXo}, v{vT3}, 4, v{vT0}")
    a(f"v_xor_b32 v{vT3}, 4, v{vT3}")
    a(f"v_lshl_add_u32 v{vXo2}, v{vT3}, 4, v{vT0}")
    sXd, sWd = 43, 50
    sRot, sKx, sKq, sK1 = 51, 68, 69, 45
    a(f"s_lshl_b32 s{sXd}, s{sL}, 12")
    a(f"s_mul_i32 s{sWd}, s{sL}, 3072")
    a("s_lshr_b32 s44, s2, 3")
    a("s_and_b32 s45, s44, 3")
    a("s_lshr_b32 s44, s44, 2")
    a("s_lshl_b32 s45, s45, 1")
    a("s_add_u32 s44, s44, s45")
    a(f"s_and_b32 s{sRot}, s44, {7 if ROTATE else 0}")
    a(f"s_lshl_b32 s{sKx}, s{sRot}, 7")
    for j in range(4):
        a(f"s_add_u32 m0, s{sXd}, {XO + j*1024}")
        a(f"s_add_u32 s44, s{sKx}, {j*8192}")
        a(f"buffer_load_dwordx4 v{vXo if j%2==0 else vXo2}, {sr(sX,4)}, s44 offen lds")
    srd(a, sWQ, 6, 512 * 1536 * 2)
    srd(a, sW1, 8, 512 * 1376 * 2)
    for j in range(3):
        a(f"v_add_u32 v{vT0}, {j*64}, v{vLane}")
        a(f"v_mul_u32_u24 v{vT1}, 43691, v{vT0}")
        a(f"v_lshrrev_b32 v{vT1}, 19, v{vT1}")
        a(f"v_mul_u32_u24 v{vT2}, 12, v{vT1}")
        a(f"v_sub_u32 v{vT2}, v{vT0}, v{vT2}")
        a(f"s_lshl_b32 s44, s{sL}, 4")
        a(f"v_add_u32 v{vT1}, s44, v{vT1}")
        a(f"v_mul_u32_u24 v{vT3}, 3072, v{vT1}")
        a(f"v_lshrrev_b32 v{vT0}, 2, v{vT2}")
        a(f"v_lshl_add_u32 v{vT3}, v{vT0}, 10, v{vT3}")
        a(f"v_and_b32 v{vT0}, 3, v{vT2}")
        a(f"v_lshl_add_u32 v{vT3}, v{vT0}, 4, v{vT3}")
        a(f"s_lshl_b32 s44, s{sCG}, 6")
        a(f"v_add_u32 v{vWq[j]}, s44, v{vT3}")
        a(f"v_mul_u32_u24 v{vT3}, 2752, v{vT1}")
        a(f"v_lshl_add_u32 v{vT3}, v{vT2}, 4, v{vT3}")
        a(f"s_lshl_b32 s44, s{sHC}, 1")
        a(f"v_add_u32 v{vW1[j]}, s44, v{vT3}")
    def dma_stage(s):
        base = (s % NBUF) * STG
        a(f"s_add_u32 s44, s{sRot}, {s}")
        a("s_and_b32 s44, s44, 7")
        a(f"s_lshl_b32 s{sKx}, s44, 7")
        a(f"s_mul_i32 s{sKq}, s44, {64*3072}")
        a(f"s_mul_i32 s{sK1}, s44, {64*2752}")
        for j in range(4 if s else 0):
            a(f"s_add_u32 m0, s{sXd}, {base + XO + j*1024}")
            a(f"s_add_u32 s44, s{sKx}, {j*8192}")
            a(f"buffer_load_dwordx4 v{vXo if j%2==0 else vXo2}, {sr(sX,4)}, s44 offen lds")
        for j in range(3):
            a(f"s_add_u32 m0, s{sWd}, {base + WQO + j*1024}")
            a("s_nop 0")
            a(f"buffer_load_dwordx4 v{vWq[j]}, {sr(sWQ,4)}, s{sKq} offen lds")
        for j in range(3):
            a(f"s_add_u32 m0, s{sWd}, {base + W1O + j*1024}")
            a("s_nop 0")
            a(f"buffer_load_dwordx4 v{vW1[j]}, {sr(sW1,4)}, s{sK1} offen lds")
    dma_stage(0)
    for s in range(NST):
        if s + 1 < NST:
            dma_stage(s + 1)
            a("s_waitcnt vmcnt(10)")
        else:
            a("s_waitcnt vmcnt(0)")
        a("s_barrier")
    srd(a, sWS, 12, WS_SIZE)
    srd(a, sW2, 60, 1376 * 512 * 2)
    srd(a, sGW, 62, 512 * 2)
    srd(a, 64, 64, 512 * 512 * 2)
    a("s_lshl_b32 s44, s2, 2")
    a(f"s_add_u32 s44, s44, s{sL}")
    a(f"v_lshrrev_b32 v{vT0}, 5, v{vLane}")
    a(f"v_lshlrev_b32 v{vT0}, 12, v{vT0}")
    a(f"v_and_b32 v{vT1}, 31, v{vLane}")
    a(f"v_lshl_add_u32 v{vT0}, v{vT1}, 1, v{vT0}")
    a(f"v_lshlrev_b32 v{vT2}, 4, v{vLane}")
    a.lab("K1_TRLOOP")
    a("s_lshr_b32 s45, s44, 4")
    a("s_and_b32 s46, s44, 15")
    a("s_lshl_b32 s45, s45, 14")
    a("s_lshl_b32 s46, s46, 6")
    a("s_add_u32 s45, s45, s46")
    for j in range(8):
        ro = j if j < 4 else 8 + j - 4
        a(f"s_add_u32 s46, s45, {ro*1024}")
        a(f"buffer_load_ushort v{16+j}, v{vT0}, {sr(sW2,4)}, s46 offen")
    a("s_waitcnt vmcnt(0)")
    for p in range(4):
        a(f"v_lshl_or_b32 v{24+p}, v{16+2*p+1}, 16, v{16+2*p}")
    a("s_lshl_b32 s46, s44, 10")
    a(f"s_add_u32 s46, s46, {WS_W2T}")
    a(f"buffer_store_dwordx4 v[24:27], v{vT2}, {sr(sWS,4)}, s46 offen {WT}")
    a("s_add_u32 s44, s44, 1024")
    a("s_cmp_lt_u32 s44, 1376")
    a("s_cbranch_scc1 K1_TRLOOP")
    a("s_cmp_ge_u32 s44, 1888")
    a("s_cbranch_scc1 K1_TRDONE")
    a("s_sub_u32 s44, s44, 1376")
    a("s_lshr_b32 s45, s44, 4")
    a("s_and_b32 s46, s44, 15")
    a("s_lshl_b32 s45, s45, 14")
    a("s_lshl_b32 s46, s46, 6")
    a("s_add_u32 s45, s45, s46")
    for j in range(8):
        ro = j if j < 4 else 8 + j - 4
        a(f"s_add_u32 s46, s45, {ro*1024}")
        a(f"buffer_load_ushort v{16+j}, v{vT0}, s[64:67], s46 offen")
    a("s_waitcnt vmcnt(0)")
    for p in range(4):
        a(f"v_lshl_or_b32 v{24+p}, v{16+2*p+1}, 16, v{16+2*p}")
    a("s_lshl_b32 s46, s44, 10")
    a(f"s_add_u32 s46, s46, {WS_WOT}")
    a(f"buffer_store_dwordx4 v[24:27], v{vT2}, {sr(sWS,4)}, s46 offen {WT}")
    a.lab("K1_TRDONE")
    a(f"s_cmp_lg_u32 s{sL}, 0")
    a("s_cbranch_scc1 K1_END")
    a(f"s_lshl_b32 s44, s{sRB}, 7")
    a(f"s_lshl_b32 s45, s{sCG}, 3")
    a("s_add_u32 s44, s44, s45")
    a("s_lshl_b32 s45, s44, 10")
    for i in range(8):
        a(f"s_add_u32 s46, s45, {i*1024}")
        a(f"buffer_load_dwordx4 {vr(32+4*i,4)}, v{vT2}, {sr(sX,4)}, s46 offen")
    a(f"buffer_load_dwordx4 v[64:67], v{vT2}, {sr(sGW,4)}, 0 offen")
    a("s_waitcnt vmcnt(0)")
    for r in range(4):
        a(f"v_lshlrev_b32 v{68+2*r}, 16, v{64+r}")
        a(f"v_and_b32 v{68+2*r+1}, 0xffff0000, v{64+r}")
    for i in range(8):
        for r in range(4):
            a(f"v_lshlrev_b32 v{vT0}, 16, v{32+4*i+r}")
            a(f"v_and_b32 v{vT1}, 0xffff0000, v{32+4*i+r}")
            if r == 0:
                a(f"v_mul_f32 v{80+i}, v{vT0}, v{68}")
            else:
                a(f"v_fma_f32 v{80+i}, v{vT0}, v{68+2*r}, v{80+i}")
            a(f"v_fma_f32 v{80+i}, v{vT1}, v{68+2*r+1}, v{80+i}")
    for off in (0x041F, 0x081F, 0x101F, 0x201F, 0x401F):
        for i in range(8):
            a(f"ds_swizzle_b32 v{88+i}, v{80+i} offset:{off}")
        a("s_waitcnt lgkmcnt(0)")
        for i in range(8):
            a(f"v_add_f32 v{80+i}, v{80+i}, v{88+i}")
    for i in range(8):
        a(f"v_mov_b32 v{88+i}, v{80+i}")
    a("s_nop 1")
    for i in range(8):
        a(f"v_permlane32_swap_b32 v{80+i}, v{88+i}")
    for i in range(8):
        a(f"v_add_f32 v{80+i}, v{80+i}, v{88+i}")
    for i in range(8):
        a(f"v_mul_f32 v{80+i}, {f32hex(-LOG2E)}, v{80+i}")
    for i in range(8):
        a(f"v_exp_f32 v{80+i}, v{80+i}")
    a("s_nop 0")
    for i in range(8):
        a(f"v_add_f32 v{80+i}, 1.0, v{80+i}")
    for i in range(8):
        a(f"v_rcp_f32 v{80+i}, v{80+i}")
    a("s_lshl_b32 s45, s44, 2")
    a(f"s_add_u32 s45, s45, {WS_G}")
    a(f"v_mov_b32 v{vT0}, 0")
    a("s_mov_b64 exec, 1")
    a(f"buffer_store_dwordx4 v[80:83], v{vT0}, {sr(sWS,4)}, s45 offen")
    a(f"buffer_store_dwordx4 v[84:87], v{vT0}, {sr(sWS,4)}, s45 offen offset:16")
    a.lab("K1_END")
    a("s_endpgm")
    a.lab("K1_COMP")
    srd(a, sB1, 10, 1376 * 2)
    srd(a, sWS, 12, WS_SIZE)
    a(f"s_lshr_b32 s{sRT}, s{sW}, 1")
    a(f"s_lshr_b32 s44, s{sW}, 2")
    a(f"s_xor_b32 s44, s44, s{sW}")
    a(f"s_and_b32 s{sNH}, s44, 1")
    vXa0 = [14, 15, 16, 17]
    vWa0 = 18
    vXa = [19, 20, 21, 22]; vWa = 23
    a(f"v_and_b32 v{vT0}, 31, v{vLane}")
    a(f"v_lshrrev_b32 v{vT1}, 5, v{vLane}")
    a(f"v_lshrrev_b32 v{vT2}, 1, v{vT0}")
    a(f"v_and_b32 v{vT2}, 7, v{vT2}")
    a(f"s_lshl_b32 s44, s{sRT}, 5")
    a(f"v_add_u32 v{vT0}, s44, v{vT0}")
    a(f"v_lshlrev_b32 v{vT0}, 7, v{vT0}")
    for kk in range(4):
        a(f"v_add_u32 v{vT3}, {2*kk}, v{vT1}")
        a(f"v_xor_b32 v{vT3}, v{vT3}, v{vT2}")
        a(f"v_lshl_add_u32 v{vXa0[kk]}, v{vT3}, 4, v{vT0}")
    a(f"v_lshrrev_b32 v{vT0}, 5, v{vLane}")
    a(f"v_lshlrev_b32 v{vT0}, 3, v{vT0}")
    a(f"v_bfe_u32 v{vT1}, v{vLane}, 2, 2")
    a(f"v_add_u32 v{vT0}, v{vT0}, v{vT1}")
    a(f"v_mul_u32_u24 v{vT0}, 192, v{vT0}")
    a(f"v_bfe_u32 v{vT1}, v{vLane}, 4, 1")
    a(f"v_lshl_add_u32 v{vT0}, v{vT1}, 5, v{vT0}")
    a(f"v_and_b32 v{vT1}, 3, v{vLane}")
    a(f"v_lshl_add_u32 v{vWa0}, v{vT1}, 3, v{vT0}")

    XF = [24, 28]
    WF = [[32, 36, 40], [44, 48, 52]]
    ACC = 64
    def acc(t): return ACC + t * 16
    a(f"s_cmp_eq_u32 s{sNH}, 1")
    a("s_cbranch_scc1 K1_NH1")

    def set_stage_addr(s):
        base = (s % NBUF) * STG
        for kk in range(4):
            a(f"v_add_u32 v{vXa[kk]}, {base + XO}, v{vXa0[kk]}")
        a(f"v_add_u32 v{vWa}, {base + WQO}, v{vWa0}")

    def mainloop(nh):
        tiles = [(0, 0, 'T'), (0, 64, 'T'), (12288, 0, 'T')] if nh == 0 else [(0, 128, 'N'), (12288, 64, 'T'), (12288, 128, 'T')]
        def reads(kk, b):
            a(f"ds_read_b128 {vr(XF[b],4)}, v{vXa[kk]}")
            for t, (reg, col, _) in enumerate(tiles):
                for half in range(2):
                    a(f"ds_read_b64_tr_b16 {vr(WF[b][t]+2*half,2)}, v{vWa} offset:{reg + col + (16*kk + 4*half)*192}")
        st.n = 1
        hts = [0] if nh == 0 else [1, 2]
        a(f"v_lshrrev_b32 v{vT0}, 5, v{vLane}")
        a(f"v_lshlrev_b32 v{vT0}, 3, v{vT0}")
        for k, hti in enumerate(hts):
            a(f"s_add_u32 s47, s{sHC}, {32*hti}")
            a("s_lshl_b32 s49, s47, 1")
            for g in range(4):
                a(f"buffer_load_dwordx2 {vr(128+8*k+2*g,2)}, v{vT0}, {sr(sB1,4)}, s49 offen offset:{16*g}")
        a("s_barrier")
        st()
        set_stage_addr(0)
        reads(0, 0)
        steps = [(s, kk) for s in range(NST) for kk in range(4)]
        for i, (s, kk) in enumerate(steps):
            b = i % 2
            a("s_waitcnt lgkmcnt(0)")
            if kk == 3 and s < NST - 1:
                a("s_barrier")
                set_stage_addr(s + 1)
            if i + 1 < len(steps):
                reads(steps[i + 1][1], 1 - b)
            for t, (reg, col, ori) in enumerate(tiles):
                cc = "0" if i == 0 else vr(acc(t), 16)
                if ori == 'T':
                    a(f"v_mfma_f32_32x32x16_bf16 {vr(acc(t),16)}, {vr(WF[b][t],4)}, {vr(XF[b],4)}, {cc}")
                else:
                    a(f"v_mfma_f32_32x32x16_bf16 {vr(acc(t),16)}, {vr(XF[b],4)}, {vr(WF[b][t],4)}, {cc}")
        st()
        vA, vB = 24, 25
        PK = 28
        vL32, vH = 26, 27
        BI = 40; BU = 48; TMP = list(range(112, 128))
        a(f"v_and_b32 v{vL32}, 31, v{vLane}")
        a(f"v_lshrrev_b32 v{vH}, 5, v{vLane}")
        a(f"s_lshl_b32 s44, s{sRB}, 2")
        a(f"s_add_u32 s46, s44, s{sRT}")
        a(f"v_lshlrev_b32 v{vA}, 4, v{vLane}")
        a("s_waitcnt vmcnt(0)")
        a("s_nop 7")
        def qk_store(t, wsbase, scale):
            r0 = acc(t)
            if scale:
                for r in range(16):
                    a(f"v_mul_f32 v{r0+r}, {f32hex(0.25*LOG2E)}, v{r0+r}")
            for p in range(8):
                a(f"v_cvt_pk_bf16_f32 v{PK+p}, v{r0+2*p}, v{r0+2*p+1}")
            a(f"s_lshl_b32 s47, s{sCG}, 17")
            a("s_lshl_b32 s48, s46, 10")
            a("s_add_u32 s47, s47, s48")
            a(f"s_add_u32 s47, s47, {wsbase}")
            a(f"buffer_store_dwordx4 {vr(PK,4)}, v{vA}, {sr(sWS,4)}, s47 offen {WT}")
            a("s_add_u32 s47, s47, 65536")
            a(f"buffer_store_dwordx4 {vr(PK+4,4)}, v{vA}, {sr(sWS,4)}, s47 offen {WT}")
            a("s_nop 1")
        def v_store(t):
            a(f"v_lshrrev_b32 v{vB}, 4, v{vL32}")
            a(f"v_lshlrev_b32 v{vB}, 16, v{vB}")
            a(f"v_lshl_add_u32 v{vB}, v{vH}, 8, v{vB}")
            a(f"v_and_b32 v{vT0}, 15, v{vL32}")
            a(f"v_lshl_add_u32 v{vB}, v{vT0}, 4, v{vB}")
            r0 = acc(t)
            for p in range(8):
                a(f"v_cvt_pk_bf16_f32 v{PK+p}, v{r0+2*p}, v{r0+2*p+1}")
            a(f"s_lshl_b32 s47, s{sCG}, 17")
            a("s_lshl_b32 s48, s46, 10")
            a("s_add_u32 s47, s47, s48")
            a(f"s_add_u32 s47, s47, {WS_V}")
            a(f"buffer_store_dwordx4 {vr(PK,4)}, v{vB}, {sr(sWS,4)}, s47 offen {WT}")
            a(f"buffer_store_dwordx4 {vr(PK+4,4)}, v{vB}, {sr(sWS,4)}, s47 offen offset:512 {WT}")
            a("s_nop 1")
        def h_store(t, hti):
            a(f"s_add_u32 s47, s{sHC}, {32*hti}")
            BI = 128 + 8 * hts.index(hti)
            for g in range(4):
                for d in range(2):
                    a(f"v_lshlrev_b32 v{BU+4*g+2*d}, 16, v{BI+2*g+d}")
                    a(f"v_and_b32 v{BU+4*g+2*d+1}, 0xffff0000, v{BI+2*g+d}")
            r0 = acc(t)
            for hf in range(2):
                mish_block(a, [r0 + 8*hf + i for i in range(8)], [BU + 8*hf + i for i in range(8)], TMP)
            for p in range(8):
                a(f"v_cvt_pk_bf16_f32 v{PK+p}, v{r0+2*p}, v{r0+2*p+1}")
            a("s_mul_i32 s48, s46, 86")
            a("s_lshr_b32 s49, s47, 4")
            a("s_add_u32 s48, s48, s49")
            a("s_lshl_b32 s48, s48, 10")
            a(f"s_add_u32 s48, s48, {WS_ACT}")
            a(f"buffer_store_dwordx4 {vr(PK,4)}, v{vA}, {sr(sWS,4)}, s48 offen")
            a(f"buffer_store_dwordx4 {vr(PK+4,4)}, v{vA}, {sr(sWS,4)}, s48 offen offset:1024")
            a("s_nop 1")
        if nh == 0:
            qk_store(0, WS_Q, True)
            qk_store(1, WS_K, False)
            h_store(2, 0)
        else:
            v_store(0)
            h_store(1, 1)
            a(f"s_cmp_ge_u32 s{sCG}, 11")
            a(f"s_cbranch_scc1 K1_SKIP2")
            h_store(2, 2)
            a.lab("K1_SKIP2")
        st()
        if STAMP: a("s_waitcnt vmcnt(0)")
        st()
        st.dump(sWS, sW, 12)
        a("s_endpgm")
    mainloop(0)
    a.lab("K1_NH1")
    mainloop(1)

    kernel_desc(a, name, 144)

def gen_k2(a):
    name = "attn_kernel"
    kernel_header(a, name)
    sWS = 16
    sHead, sQC, sW = 20, 21, 22
    sMaskLo = 24
    sFlag = 26
    KL = 0; VL = 65536; FL = 131072; RB = 131072 + 256
    CH = [0, 4, 16, 32, 48]
    a("s_cmp_ge_u32 s2, 256")
    a("s_cbranch_scc1 K2_END")
    a("s_load_dwordx2 s[12:13], s[0:1], 80")
    a("s_and_b32 s44, s2, 7")
    a("s_lshr_b32 s45, s2, 3")
    a("s_lshl_b32 s44, s44, 2")
    a("s_and_b32 s46, s45, 3")
    a(f"s_add_u32 s{sHead}, s44, s46")
    a(f"s_lshr_b32 s{sQC}, s45, 2")
    vLane, vT0, vT1, vT2 = 1, 2, 3, 4
    a(f"v_and_b32 v{vLane}, 63, v0")
    a(f"v_lshrrev_b32 v{vT0}, 6, v0")
    a("s_nop 0")
    a(f"v_readfirstlane_b32 s{sW}, v{vT0}")
    a("s_waitcnt lgkmcnt(0)")
    srd(a, sWS, 12, WS_SIZE)
    vL16 = 5
    st = Stamps(a, 1); st()
    a(f"v_lshlrev_b32 v{vL16}, 4, v{vLane}")
    a(f"s_lshl_b32 s44, s{sHead}, 16")
    a(f"s_cmp_lt_u32 s{sW}, 8")
    a("s_cbranch_scc1 K2_ATT")
    sL = 23
    a(f"s_sub_u32 s{sL}, s{sW}, 8")
    vFl = 6; vOne = 7
    a(f"v_mov_b32 v{vFl}, {FL}")
    a(f"v_mov_b32 v{vOne}, 1")
    a(f"s_lshl_b32 s45, s{sL}, 10")
    a("s_add_u32 s46, s44, s45")
    def issue_chunk(c):
        t0 = CH[c]; t1 = CH[c + 1] if c + 1 < len(CH) else 64
        for (wsb, ldsb) in ((WS_K, KL), (WS_V, VL)):
            for i in range((t1 - t0) // 4):
                a(f"s_add_u32 m0, s45, {ldsb + t0*1024 + i*4096}")
                a(f"s_add_u32 s47, s46, {wsb + t0*1024 + i*4096}")
                a(f"buffer_load_dwordx4 v{vL16}, {sr(sWS,4)}, s47 offen lds")
        return (t1 - t0) // 2
    def signal(c):
        a("s_mov_b64 exec, 1")
        a(f"ds_add_u32 v{vFl}, v{vOne} offset:{4*c}")
        a("s_mov_b64 exec, -1")
    st.n = 1
    issue_chunk(0)
    a(f"v_mov_b32 v{vT1}, 0")
    a(f"v_lshl_add_u32 v{vT0}, v{vLane}, 2, v{vFl}")
    a(f"ds_write_b32 v{vT0}, v{vT1}")
    for c in range(1, len(CH)):
        n = issue_chunk(c)
        if c == 1:
            a("s_waitcnt lgkmcnt(0)")
            a("s_barrier")
        a(f"s_waitcnt vmcnt({n})"); signal(c - 1)
    a("s_waitcnt vmcnt(0)"); signal(len(CH) - 1)
    st()
    ACC = 64
    FR = [8, 24, 40]
    sA, sB = 27, 28
    a(f"s_mul_i32 s47, s{sL}, 21")
    a(f"s_lshl_b32 s48, s{sHead}, 1")
    a("s_mul_i32 s48, s48, 86")
    a("s_add_u32 s48, s48, s47")
    a("s_lshl_b32 s48, s48, 10")
    a(f"s_add_u32 s{sA}, s48, {WS_ACT}")
    a("s_lshl_b32 s48, s47, 4")
    a(f"s_lshl_b32 s49, s{sQC}, 1")
    a("s_add_u32 s48, s48, s49")
    a("s_lshl_b32 s48, s48, 10")
    a(f"s_add_u32 s{sB}, s48, {WS_W2T}")
    def gl(i, fr):
        a(f"s_add_u32 s47, s{sA}, {i*1024}")
        a(f"buffer_load_dwordx4 {vr(fr,4)}, v{vL16}, {sr(sWS,4)}, s47 offen")
        a(f"s_add_u32 s47, s{sA}, {i*1024 + 86*1024}")
        a(f"buffer_load_dwordx4 {vr(fr+4,4)}, v{vL16}, {sr(sWS,4)}, s47 offen")
        a(f"s_add_u32 s47, s{sB}, {i*16384}")
        a(f"buffer_load_dwordx4 {vr(fr+8,4)}, v{vL16}, {sr(sWS,4)}, s47 offen")
        a(f"buffer_load_dwordx4 {vr(fr+12,4)}, v{vL16}, {sr(sWS,4)}, s47 offen offset:1024")
    def mm(fr, first):
        for aa in range(2):
            for bb in range(2):
                d = ACC + (aa * 2 + bb) * 16
                cc = "0" if first else vr(d, 16)
                a(f"v_mfma_f32_32x32x16_bf16 {vr(d,16)}, {vr(fr+8+4*bb,4)}, {vr(fr+4*aa,4)}, {cc}")
    NK = 21
    gl(0, FR[0]); gl(1, FR[1])
    for i in range(NK):
        if i + 2 < NK:
            gl(i + 2, FR[(i + 2) % 3])
            a("s_waitcnt vmcnt(8)")
        elif i + 1 < NK:
            a("s_waitcnt vmcnt(4)")
        else:
            a("s_waitcnt vmcnt(0)")
        mm(FR[i % 3], i == 0)
    a(f"s_cmp_ge_u32 s{sL}, 2")
    a("s_cbranch_scc1 K2_NOX")
    a(f"s_mul_i32 s48, s{sL}, 20")
    a("s_sub_u32 s48, 84, s48")
    a("s_lshl_b32 s49, s48, 10")
    a(f"s_add_u32 s{sA}, s{sA}, s49")
    a("s_lshl_b32 s49, s48, 14")
    a(f"s_add_u32 s{sB}, s{sB}, s49")
    gl(0, FR[0])
    a("s_waitcnt vmcnt(0)")
    mm(FR[0], False)
    a.lab("K2_NOX")
    a("s_nop 15")
    st()
    vRa = 8
    a(f"v_add_u32 v{vRa}, {RB}, v{vL16}")
    a(f"s_cmp_eq_u32 s{sL}, 3")
    a("s_cbranch_scc1 K2_RW")
    a(f"s_sub_u32 s48, 3, s{sL}")
    a.lab("K2_RSPIN")
    a(f"ds_read_b32 v{vT0}, v{vFl} offset:32")
    a("s_waitcnt lgkmcnt(0)")
    a(f"v_readfirstlane_b32 s47, v{vT0}")
    a("s_nop 3")
    a("s_cmp_ge_u32 s47, s48")
    a("s_cbranch_scc1 K2_RGO")
    a("s_sleep 4")
    a("s_branch K2_RSPIN")
    a.lab("K2_RGO")
    for half in range(2):
        for i in range(8):
            a(f"ds_read_b128 {vr(12+4*i,4)}, v{vRa} offset:{(8*half+i)*1024}")
        a("s_waitcnt lgkmcnt(0)")
        for i in range(32):
            a(f"v_add_f32 v{ACC+32*half+i}, v{ACC+32*half+i}, v{12+i}")
    a(f"s_cmp_eq_u32 s{sL}, 0")
    a("s_cbranch_scc1 K2_RST")
    a.lab("K2_RW")
    for i in range(16):
        a(f"ds_write_b128 v{vRa}, {vr(ACC+4*i,4)} offset:{i*1024}")
    a("s_waitcnt lgkmcnt(0)")
    a("s_mov_b64 exec, 1")
    a(f"ds_add_u32 v{vFl}, v{vOne} offset:32")
    a("s_waitcnt lgkmcnt(0)")
    a("s_mov_b64 exec, -1")
    st(); st(); st()
    st.dump(sWS, sW, 12)
    a("s_endpgm")
    a.lab("K2_RST")
    st.n = 3
    for aa in range(2):
        for bb in range(2):
            a(f"s_lshl_b32 s47, s{sHead}, 1")
            a(f"s_add_u32 s47, s47, {aa}")
            a("s_lshl_b32 s47, s47, 4")
            a(f"s_lshl_b32 s48, s{sQC}, 1")
            a("s_add_u32 s47, s47, s48")
            a(f"s_add_u32 s47, s47, {bb}")
            a("s_lshl_b32 s47, s47, 11")
            a(f"s_add_u32 s47, s47, {WS_B}")
            d0 = ACC + (aa*2+bb)*16
            for p in range(8):
                a(f"v_cvt_pk_bf16_f32 v{d0+p}, v{d0+2*p}, v{d0+2*p+1}")
            for i in range(2):
                a(f"buffer_store_dwordx4 {vr(d0+4*i,4)}, v{vL16}, {sr(sWS,4)}, s47 offen offset:{i*1024} {WT}")
    st(); st(); st()
    st.dump(sWS, sW, 12)
    a.lab("K2_END")
    a("s_endpgm")
    a.lab("K2_ATT")
    st.n = 1
    QF = 8
    a(f"s_lshl_b32 s47, s{sQC}, 3")
    a(f"s_add_u32 s47, s47, s{sW}")
    a("s_lshl_b32 s47, s47, 10")
    a("s_add_u32 s47, s47, s44")
    a(f"s_add_u32 s47, s47, {WS_Q}")
    a(f"buffer_load_dwordx4 {vr(QF,4)}, v{vL16}, {sr(sWS,4)}, s47 offen")
    MN = 16
    S = [32, 48]
    O = 64
    P = 80
    KF = [88, 92, 96]
    VF = [100, 104, 108, 112]
    vKa, vVa = 6, 7
    vRun = 12; vFl = 13
    a(f"v_mov_b32 v{vFl}, {FL}")
    a(f"v_mov_b32 v{vT1}, 0")
    a(f"v_and_b32 v{vT0}, 31, v{vLane}")
    a(f"v_mov_b32 v{vT2}, 0x3f803f80")
    a(f"v_and_b32 v14, 27, v{vT0}")
    a("v_cmp_eq_u32 vcc, 16, v14")
    a("s_nop 1")
    a(f"v_cndmask_b32 v{vT1}, v{vT1}, v{vT2}, vcc")
    for b in VF:
        for r in range(4):
            a(f"v_mov_b32 v{b+r}, v{vT1}")
    a(f"v_cmp_gt_u32 vcc, 16, v{vT0}")
    a("s_nop 1")
    a(f"s_mov_b64 {sr(sMaskLo,2)}, vcc")
    a(f"v_mov_b32 v{vKa}, v{vL16}")
    a(f"v_lshrrev_b32 v{vT1}, 5, v{vLane}")
    a(f"v_lshlrev_b32 v{vT1}, 8, v{vT1}")
    a(f"v_and_b32 v{vT2}, 15, v{vLane}")
    a(f"v_lshl_add_u32 v{vVa}, v{vT2}, 4, v{vT1}")
    a(f"v_add_u32 v{vVa}, {VL}, v{vVa}")
    lc = [0]
    def wait_chunk(c):
        lc[0] += 1
        lb = f"K2_WC{lc[0]}"
        a.lab(lb)
        a(f"ds_read_b32 v{vT0}, v{vFl} offset:{4*c}")
        a("s_waitcnt lgkmcnt(0)")
        a(f"v_readfirstlane_b32 s47, v{vT0}")
        a("s_nop 3")
        a("s_cmp_ge_u32 s47, 4")
        a(f"s_cbranch_scc1 {lb}D")
        a("s_sleep 2")
        a(f"s_branch {lb}")
        a.lab(lb + "D")
    a("s_barrier")
    st()
    wait_chunk(0)
    a("s_waitcnt vmcnt(0)")
    st()
    a(f"ds_read_b128 {vr(KF[0],4)}, v{vKa}")
    a("s_waitcnt lgkmcnt(0)")
    a(f"v_mfma_f32_32x32x16_bf16 {vr(S[0],16)}, {vr(KF[0],4)}, {vr(QF,4)}, 0")
    a("s_nop 15")
    a(f"v_max3_f32 v{vRun}, v{S[0]}, v{S[0]+1}, v{S[0]+2}")
    for r in range(3, 15, 2):
        a(f"v_max3_f32 v{vRun}, v{vRun}, v{S[0]+r}, v{S[0]+r+1}")
    a(f"v_max_f32 v{vRun}, v{vRun}, v{S[0]+15}")
    a(f"v_mov_b32 v{vT1}, v{vRun}")
    a("s_nop 1")
    a(f"v_permlane32_swap_b32 v{vRun}, v{vT1}")
    a(f"v_max_f32 v{vRun}, v{vRun}, v{vT1}")
    a(f"v_sub_f32 v{vRun}, 0, v{vRun}")
    for r in range(16):
        a(f"v_mov_b32 v{MN+r}, v{vRun}")
    a(f"s_mov_b32 s{sFlag}, 0")
    st()
    NT = 64
    a.lab("K2_PASS2")
    def rdK(t):
        a(f"ds_read_b128 {vr(KF[t%3],4)}, v{vKa} offset:{t*1024}")
    def rdV(t):
        a(f"s_mov_b64 exec, {sr(sMaskLo,2)}")
        for g in range(2):
            a(f"ds_read_b128 {vr(VF[(t%2)*2+g],4)}, v{vVa} offset:{(2*t+g)*512}")
        a("s_mov_b64 exec, -1")
    rdK(0); rdK(1); rdV(0)
    a("s_waitcnt lgkmcnt(0)")
    a(f"v_mfma_f32_32x32x16_bf16 {vr(S[0],16)}, {vr(KF[0],4)}, {vr(QF,4)}, {vr(MN,16)}")
    a("s_nop 7")
    for t in range(NT):
        sb = S[t % 2]
        if (t + 2) in CH[1:]:
            wait_chunk(CH.index(t + 2))
        if t + 2 < NT: rdK(t + 2)
        if t + 1 < NT: rdV(t + 1)
        nout = (1 if t + 2 < NT else 0) + (2 if t + 1 < NT else 0)
        a(f"s_waitcnt lgkmcnt({nout})")
        if t + 1 < NT:
            a(f"v_mfma_f32_32x32x16_bf16 {vr(S[(t+1)%2],16)}, {vr(KF[(t+1)%3],4)}, {vr(QF,4)}, {vr(MN,16)}")
        for g in range(2):
            for r in range(8):
                a(f"v_exp_f32 v{sb+8*g+r}, v{sb+8*g+r}")
            for p in range(4):
                a(f"v_cvt_pk_bf16_f32 v{P+4*g+p}, v{sb+8*g+2*p}, v{sb+8*g+2*p+1}")
            a("s_nop 1")
            cc = "0" if (t == 0 and g == 0) else vr(O, 16)
            a(f"v_mfma_f32_32x32x16_bf16 {vr(O,16)}, {vr(VF[(t%2)*2+g],4)}, {vr(P+4*g,4)}, {cc}")
    a("s_nop 15")
    a(f"s_cmp_eq_u32 s{sFlag}, 1")
    a("s_cbranch_scc1 K2_EPI")
    a(f"v_cmp_ngt_f32 vcc, {f32hex(2.0**60)}, v{O+8}")
    a("s_nop 4")
    a("s_cmp_eq_u64 vcc, 0")
    a("s_cbranch_scc1 K2_EPI")
    a(f"v_mov_b32 v{vRun}, 0xff800000")
    a("s_mov_b32 s47, 0")
    a(f"v_mov_b32 v{vT0}, v{vKa}")
    a.lab("K2_P1LOOP")
    a(f"ds_read_b128 {vr(KF[0],4)}, v{vT0}")
    a("s_waitcnt lgkmcnt(0)")
    a(f"v_mfma_f32_32x32x16_bf16 {vr(S[0],16)}, {vr(KF[0],4)}, {vr(QF,4)}, 0")
    a("s_nop 15")
    for r in range(0, 16, 2):
        a(f"v_max3_f32 v{vRun}, v{vRun}, v{S[0]+r}, v{S[0]+r+1}")
    a(f"v_add_u32 v{vT0}, 1024, v{vT0}")
    a("s_add_u32 s47, s47, 1")
    a("s_cmp_lt_u32 s47, 64")
    a("s_cbranch_scc1 K2_P1LOOP")
    a(f"v_mov_b32 v{vT1}, v{vRun}")
    a("s_nop 1")
    a(f"v_permlane32_swap_b32 v{vRun}, v{vT1}")
    a(f"v_max_f32 v{vRun}, v{vRun}, v{vT1}")
    a(f"v_sub_f32 v{vRun}, 0, v{vRun}")
    for r in range(16):
        a(f"v_mov_b32 v{MN+r}, v{vRun}")
    a(f"s_mov_b32 s{sFlag}, 1")
    a("s_branch K2_PASS2")
    a.lab("K2_EPI")
    st()
    a(f"v_rcp_f32 v{vT0}, v{O+8}")
    a("s_nop 0")
    for r in range(8):
        a(f"v_mul_f32 v{O+r}, v{O+r}, v{vT0}")
    for p in range(4):
        a(f"v_cvt_pk_bf16_f32 v{P+p}, v{O+2*p}, v{O+2*p+1}")
    a(f"s_lshl_b32 s47, s{sQC}, 3")
    a(f"s_add_u32 s47, s47, s{sW}")
    a("s_lshl_b32 s47, s47, 5")
    a(f"s_add_u32 s47, s47, s{sHead}")
    a("s_lshl_b32 s47, s47, 10")
    a(f"s_add_u32 s47, s47, {WS_O}")
    a(f"buffer_store_dwordx4 {vr(P,4)}, v{vL16}, {sr(sWS,4)}, s47 offen")
    if STAMP: a("s_waitcnt vmcnt(0)")
    st()
    st.dump(sWS, sW, 12)
    a("s_endpgm")

    kernel_desc(a, name, 128)

def gen_k3(a):
    name = "out_kernel"
    kernel_header(a, name)
    sWS, sOut = 16, 36
    sRB, sCB, sW, sWM, sWN = 40, 41, 42, 43, 49
    a("s_cmp_ge_u32 s2, 256")
    a("s_cbranch_scc1 K3_END")
    a("s_load_dwordx2 s[12:13], s[0:1], 64")
    a("s_load_dwordx2 s[14:15], s[0:1], 80")
    a("s_and_b32 s44, s2, 7")
    a("s_lshr_b32 s45, s2, 3")
    a("s_lshl_b32 s44, s44, 2")
    a("s_and_b32 s46, s45, 3")
    a(f"s_add_u32 s{sRB}, s44, s46")
    a(f"s_lshr_b32 s{sCB}, s45, 2")
    vLane, vT0, vT1, vL16 = 1, 2, 3, 4
    a(f"v_and_b32 v{vLane}, 63, v0")
    a(f"v_lshrrev_b32 v{vT0}, 6, v0")
    a(f"v_lshlrev_b32 v{vL16}, 4, v{vLane}")
    a(f"v_readfirstlane_b32 s{sW}, v{vT0}")
    a("s_waitcnt lgkmcnt(0)")
    srd(a, sWS, 14, WS_SIZE)
    srd(a, sOut, 12, 2048 * 512 * 2)
    st = Stamps(a, 2); st()
    a(f"s_lshr_b32 s{sWM}, s{sW}, 1")
    a(f"s_and_b32 s{sWN}, s{sW}, 1")
    FR = 96
    ACC = 32
    BB = 8
    vTok = 5; vG = 6
    a(f"s_lshl_b32 s44, s{sRB}, 6")
    a(f"s_lshl_b32 s45, s{sW}, 3")
    a("s_add_u32 s44, s44, s45")
    a("s_lshl_b32 s44, s44, 10")
    a(f"s_add_u32 s44, s44, {WS_O}")
    a(f"s_lshl_b32 s45, s{sW}, 7")
    a(f"s_lshl_b32 s46, s{sCB}, 1")
    a("s_add_u32 s45, s45, s46")
    a("s_lshl_b32 s45, s45, 10")
    a(f"s_add_u32 s45, s45, {WS_WOT}")
    for i in range(8):
        fr = FR + 16 * i
        a(f"s_add_u32 s46, s44, {i*1024}")
        a(f"buffer_load_dwordx4 {vr(fr,4)}, v{vL16}, {sr(sWS,4)}, s46 offen")
        a(f"s_add_u32 s46, s44, {i*1024 + 32768}")
        a(f"buffer_load_dwordx4 {vr(fr+4,4)}, v{vL16}, {sr(sWS,4)}, s46 offen")
        a(f"s_add_u32 s46, s45, {i*16384}")
        a(f"buffer_load_dwordx4 {vr(fr+8,4)}, v{vL16}, {sr(sWS,4)}, s46 offen")
        a(f"buffer_load_dwordx4 {vr(fr+12,4)}, v{vL16}, {sr(sWS,4)}, s46 offen offset:1024")
    a(f"v_and_b32 v{vT0}, 31, v{vLane}")
    a(f"s_lshl_b32 s44, s{sRB}, 6")
    a(f"s_lshl_b32 s45, s{sWM}, 5")
    a("s_add_u32 s44, s44, s45")
    a(f"v_add_u32 v{vTok}, s44, v{vT0}")
    a(f"v_lshlrev_b32 v{vT0}, 2, v{vTok}")
    a(f"s_mov_b32 s44, {WS_G}")
    a(f"buffer_load_dword v{vG}, v{vT0}, {sr(sWS,4)}, s44 offen")
    a(f"s_lshl_b32 s47, s{sRB}, 1")
    a(f"s_add_u32 s47, s47, s{sWM}")
    a("s_lshl_b32 s47, s47, 4")
    a(f"s_lshl_b32 s48, s{sCB}, 1")
    a("s_add_u32 s47, s47, s48")
    a(f"s_add_u32 s47, s47, s{sWN}")
    a("s_lshl_b32 s47, s47, 11")
    a(f"s_add_u32 s47, s47, {WS_B}")
    for i in range(2):
        a(f"buffer_load_dwordx4 {vr(BB+8+4*i,4)}, v{vL16}, {sr(sWS,4)}, s47 offen offset:{i*1024}")
    st()
    for i in range(8):
        fr = FR + 16 * i
        a(f"s_waitcnt vmcnt({3 + 4*(7-i)})")
        if i == 0: st()
        for aa in range(2):
            for bb in range(2):
                d = ACC + (aa * 2 + bb) * 16
                cc = "0" if i == 0 else vr(d, 16)
                a(f"v_mfma_f32_32x32x16_bf16 {vr(d,16)}, {vr(fr+8+4*bb,4)}, {vr(fr+4*aa,4)}, {cc}")
    st()
    a(f"s_lshl_b32 s44, s{sW}, 12")
    a(f"v_add_u32 v{vT0}, s44, v{vL16}")
    a("s_nop 15")
    for own in range(4):
        a(f"s_cmp_eq_u32 s{sW}, {own}")
        a(f"s_cbranch_scc1 K3_SK{own}")
        for i in range(4):
            a(f"ds_write_b128 v{vT0}, {vr(ACC+16*own+4*i,4)} offset:{own*16384 + i*1024}")
        a.lab(f"K3_SK{own}")
    for own in range(4):
        a(f"s_cmp_lg_u32 s{sW}, {own}")
        a(f"s_cbranch_scc1 K3_MV{own}")
        for r in range(16):
            a(f"v_mov_b32 v{FR+r}, v{ACC+16*own+r}")
        a.lab(f"K3_MV{own}")
    a("s_waitcnt lgkmcnt(0)")
    a("s_barrier")
    a(f"s_lshl_b32 s44, s{sW}, 14")
    a(f"v_add_u32 v{vT0}, s44, v{vL16}")
    for src in range(4):
        for i in range(4):
            a(f"ds_read_b128 {vr(ACC+16*src+4*i,4)}, v{vT0} offset:{src*4096 + i*1024}")
    a("s_waitcnt vmcnt(0)")
    for p in range(8):
        a(f"v_lshlrev_b32 v{BB+2*p}, 16, v{BB+8+p}")
        a(f"v_and_b32 v{BB+2*p+1}, 0xffff0000, v{BB+8+p}")
    a("s_waitcnt lgkmcnt(0)")
    for src in range(4):
        a(f"s_cmp_eq_u32 s{sW}, {src}")
        a(f"s_cbranch_scc1 K3_AD{src}")
        for r in range(16):
            a(f"v_add_f32 v{FR+r}, v{FR+r}, v{ACC+16*src+r}")
        a.lab(f"K3_AD{src}")
    for r in range(16):
        a(f"v_sub_f32 v{FR+r}, v{FR+r}, v{BB+r}")
    for r in range(16):
        a(f"v_fma_f32 v{FR+r}, v{vG}, v{FR+r}, v{BB+r}")
    for p in range(8):
        a(f"v_cvt_pk_bf16_f32 v{BB+p}, v{FR+2*p}, v{FR+2*p+1}")
    a("s_nop 1")
    a(f"v_permlane32_swap_b32 v{BB}, v{BB+2}")
    a(f"v_permlane32_swap_b32 v{BB+1}, v{BB+3}")
    a(f"v_permlane32_swap_b32 v{BB+4}, v{BB+6}")
    a(f"v_permlane32_swap_b32 v{BB+5}, v{BB+7}")
    a(f"v_lshlrev_b32 v{vT0}, 10, v{vTok}")
    a(f"v_lshrrev_b32 v{vT1}, 5, v{vLane}")
    a(f"v_lshl_add_u32 v{vT0}, v{vT1}, 4, v{vT0}")
    a(f"s_lshl_b32 s44, s{sCB}, 7")
    a(f"s_lshl_b32 s45, s{sWN}, 6")
    a("s_add_u32 s44, s44, s45")
    a(f"buffer_store_dwordx4 {vr(BB,4)}, v{vT0}, {sr(sOut,4)}, s44 offen")
    a(f"buffer_store_dwordx4 {vr(BB+4,4)}, v{vT0}, {sr(sOut,4)}, s44 offen offset:32")
    st()
    if STAMP: a("s_waitcnt vmcnt(0)")
    st()
    st.dump(sWS, sW, 4)
    a.lab("K3_END")
    a("s_endpgm")
    kernel_desc(a, name, 224)

def main():
    a = A()
    hdr = open(f"cdna_kernels/{NAME}.s.ref").read().splitlines()
    for ln in hdr:
        if ln.startswith("; @launch") or ln.startswith("; Override") or ln.startswith("; grid=ceil"):
            continue
        if not ln.startswith(";"):
            break
        a.raw(ln)
    a.raw("; @launch kernel=proj_kernel grid=(256,1,1) block=(768,1,1) lds=122880")
    a.raw("; @launch kernel=attn_kernel grid=(256,1,1) block=(768,1,1) lds=147712")
    a.raw("; @launch kernel=out_kernel grid=(256,1,1) block=(256,1,1) lds=65536")
    a.raw('.amdgcn_target "amdgcn-amd-amdhsa--gfx950"')
    gen_k1(a)
    gen_k2(a)
    gen_k3(a)
    out = sys.argv[1] if len(sys.argv) > 1 else f"cdna_kernels/{NAME}.s"
    open(out, "w").write("\n".join(a.l) + "\n")
main()
```

```python
import sys
NAME = "gated_mix__softmax_full_mha__dense_activation_mish__prompt"

WS_Q = 0
WS_K = 2 << 20
WS_V = 4 << 20
WS_ACT = 6 << 20
WS_O = 12 << 20
WS_G = 14 << 20
WS_B = 16 << 20
WS_W2T = 20 << 20
WS_WOT = 22 << 20
WS_SIZE = 268435456
LOG2E = 1.4426950408889634

import struct
def f32hex(x):
    return "0x%08x" % struct.unpack("<I", struct.pack("<f", x))[0]

import os
STFLAGS = os.environ.get("STFLAGS", "")
WT = os.environ.get("WT", "sc1")
ROTATE = int(os.environ.get("ROTATE", "1"))
MAP84 = int(os.environ.get("MAP84", "0"))
class A:
    def __init__(self):
        self.l = []
    def __call__(self, s):
        if STFLAGS and s.startswith("buffer_store"):
            s = s + " " + STFLAGS
        self.l.append("    " + s)
    def lab(self, s):
        self.l.append(s + ":")
    def raw(self, s):
        self.l.append(s)
    def c(self, s):
        self.l.append("    ; " + s)

def vr(b, n=1):
    return f"v{b}" if n == 1 else f"v[{b}:{b+n-1}]"
def sr(b, n=1):
    return f"s{b}" if n == 1 else f"s[{b}:{b+n-1}]"

def srd(a, dst, ptr, size):
    a(f"s_mov_b32 s{dst}, s{ptr}")
    a(f"s_and_b32 s{dst+1}, s{ptr+1}, 0xffff")
    a(f"s_mov_b32 s{dst+2}, {size}")
    a(f"s_mov_b32 s{dst+3}, 0x00020000")

def kernel_header(a, name):
    a.raw(".text")
    a.raw(f".globl {name}")
    a.raw(".p2align 8")
    a.raw(f".type {name},@function")
    a.lab(name)

def kernel_desc(a, name, vgpr, sgpr=102, accum=None):
    if accum is None:
        accum = (vgpr + 3) // 4 * 4
    a.raw('.section .rodata,"a"')
    a.raw(".p2align 6")
    a.raw(f".amdhsa_kernel {name}")
    a.raw(f"  .amdhsa_next_free_vgpr {vgpr}")
    a.raw(f"  .amdhsa_next_free_sgpr {sgpr}")
    a.raw(f"  .amdhsa_accum_offset {accum}")
    a.raw("  .amdhsa_group_segment_fixed_size 0")
    a.raw("  .amdhsa_kernarg_size 88")
    a.raw("  .amdhsa_user_sgpr_count 2")
    a.raw("  .amdhsa_user_sgpr_kernarg_segment_ptr 1")
    a.raw("  .amdhsa_system_sgpr_workgroup_id_x 1")
    a.raw(".end_amdhsa_kernel")

import os
STAMP = int(os.environ.get("STAMP", "0"))
WS_DBG = 24 << 20
class Stamps:
    def __init__(self, a, kid):
        self.a = a; self.n = 0; self.kid = kid
    def __call__(self):
        if not STAMP: return
        if self.n == 0: self.a("s_memrealtime s[96:97]")
        self.a(f"s_memtime s[{70+2*self.n}:{71+2*self.n}]")
        self.n += 1
    def dump(self, sWS, sWave, nwaves):
        if not STAMP: return
        a = self.a
        a("s_memrealtime s[98:99]")
        a("s_waitcnt lgkmcnt(0)")
        a(f"s_mul_i32 s68, s2, {nwaves}")
        a(f"s_add_u32 s68, s68, s{sWave}")
        a("s_lshl_b32 s68, s68, 7")
        a(f"s_add_u32 s68, s68, {WS_DBG + self.kid * (1 << 20)}")
        a("v_mov_b32 v2, 0")
        for i in range(self.n):
            a(f"v_mov_b32 v3, s{70+2*i}")
            a(f"buffer_store_dword v3, v2, {sr(sWS,4)}, s68 offen offset:{4*i}")
        for i, sg in ((30, 96), (31, 98)):
            a(f"v_mov_b32 v3, s{sg}")
            a(f"buffer_store_dword v3, v2, {sr(sWS,4)}, s68 offen offset:{4*i}")

def mish_block(a, regs, bias, tmp):
    n = len(regs)
    t = tmp[:n]; u = tmp[n:2*n]
    for i in range(n): a(f"v_add_f32 v{regs[i]}, v{regs[i]}, v{bias[i]}")
    for i in range(n): a(f"v_mul_f32 v{t[i]}, {f32hex(LOG2E)}, v{regs[i]}")
    for i in range(n): a(f"v_min_f32 v{t[i]}, {f32hex(30.0)}, v{t[i]}")
    for i in range(n): a(f"v_exp_f32 v{t[i]}, v{t[i]}")
    a("s_nop 0")
    for i in range(n): a(f"v_add_f32 v{u[i]}, 2.0, v{t[i]}")
    for i in range(n): a(f"v_mul_f32 v{u[i]}, v{u[i]}, v{t[i]}")
    for i in range(n): a(f"v_add_f32 v{t[i]}, 2.0, v{u[i]}")
    for i in range(n): a(f"v_rcp_f32 v{t[i]}, v{t[i]}")
    a("s_nop 0")
    for i in range(n): a(f"v_mul_f32 v{u[i]}, v{u[i]}, v{t[i]}")
    for i in range(n): a(f"v_mul_f32 v{regs[i]}, v{regs[i]}, v{u[i]}")


def gen_k1(a):
    name = "proj_kernel"
    kernel_header(a, name)
    STG = 40960; XO = 0; WQO = 16384; W1O = 28672; NBUF = 3; NST = 8
    sX, sWQ, sW1, sB1, sWS, sW2, sGW = 16, 20, 24, 28, 32, 52, 56
    sRB, sCG, sW, sHC, sRT, sNH = 36, 37, 38, 39, 40, 41
    a("s_cmp_ge_u32 s2, 256")
    a("s_cbranch_scc1 K1_END")
    a("s_load_dwordx4 s[4:7], s[0:1], 0")
    a("s_load_dwordx4 s[8:11], s[0:1], 32")
    a("s_load_dwordx2 s[12:13], s[0:1], 80")
    a("s_load_dwordx4 s[60:63], s[0:1], 48")
    a("s_load_dwordx2 s[64:65], s[0:1], 16")
    a("s_and_b32 s44, s2, 7")
    a("s_lshr_b32 s45, s2, 3")
    if MAP84:
        a("s_and_b32 s46, s44, 1")
        a("s_lshl_b32 s46, s46, 3")
        a("s_and_b32 s47, s45, 7")
        a(f"s_add_u32 s{sRB}, s46, s47")
        a("s_lshr_b32 s46, s44, 1")
        a("s_lshl_b32 s46, s46, 2")
        a("s_lshr_b32 s47, s45, 3")
        a(f"s_add_u32 s{sCG}, s46, s47")
    else:
        a("s_and_b32 s46, s44, 3")
        a("s_lshl_b32 s46, s46, 2")
        a("s_and_b32 s47, s45, 3")
        a(f"s_add_u32 s{sRB}, s46, s47")
        a("s_lshr_b32 s46, s44, 2")
        a("s_lshl_b32 s46, s46, 3")
        a("s_lshr_b32 s47, s45, 2")
        a(f"s_add_u32 s{sCG}, s46, s47")
    a(f"s_mul_i32 s46, s{sCG}, 96")
    a(f"s_lshl_b32 s47, s{sCG}, 6")
    a("s_add_u32 s47, s47, 352")
    a(f"s_cmp_lt_u32 s{sCG}, 11")
    a(f"s_cselect_b32 s{sHC}, s46, s47")
    vLane, vT0, vT1, vT2, vT3 = 1, 2, 3, 4, 5
    a(f"v_and_b32 v{vLane}, 63, v0")
    a(f"v_lshrrev_b32 v{vT0}, 6, v0")
    a("s_nop 0")
    a(f"v_readfirstlane_b32 s{sW}, v{vT0}")
    a("s_waitcnt lgkmcnt(0)")
    srd(a, sX, 4, 2048 * 512 * 2)
    st = Stamps(a, 0); st()
    a(f"s_cmp_lt_u32 s{sW}, 8")
    a("s_cbranch_scc1 K1_COMP")
    sL = 42
    a(f"s_sub_u32 s{sL}, s{sW}, 8")
    vXo = 6; vWq = [7, 8, 9]; vW1 = [10, 11, 12]; vXo2 = 13
    a(f"v_lshrrev_b32 v{vT0}, 3, v{vLane}")
    a(f"v_and_b32 v{vT1}, 7, v{vLane}")
    a(f"v_lshrrev_b32 v{vT2}, 1, v{vT0}")
    a(f"v_xor_b32 v{vT3}, v{vT1}, v{vT2}")
    a(f"s_lshl_b32 s44, s{sRB}, 7")
    a(f"s_lshl_b32 s45, s{sL}, 5")
    a("s_add_u32 s44, s44, s45")
    a(f"v_add_u32 v{vT0}, s44, v{vT0}")
    a(f"v_lshlrev_b32 v{vT0}, 10, v{vT0}")
    a(f"v_lshl_add_u32 v{vXo}, v{vT3}, 4, v{vT0}")
    a(f"v_xor_b32 v{vT3}, 4, v{vT3}")
    a(f"v_lshl_add_u32 v{vXo2}, v{vT3}, 4, v{vT0}")
    sXd, sWd = 43, 50
    sRot, sKx, sKq, sK1 = 51, 68, 69, 45
    a(f"s_lshl_b32 s{sXd}, s{sL}, 12")
    a(f"s_mul_i32 s{sWd}, s{sL}, 3072")
    a("s_lshr_b32 s44, s2, 3")
    if MAP84:
        a("s_lshr_b32 s45, s44, 3")
        a("s_and_b32 s44, s44, 7")
    else:
        a("s_and_b32 s45, s44, 3")
        a("s_lshr_b32 s44, s44, 2")
    a("s_lshl_b32 s45, s45, 1")
    a("s_add_u32 s44, s44, s45")
    a(f"s_and_b32 s{sRot}, s44, {7 if ROTATE else 0}")
    a(f"s_lshl_b32 s{sKx}, s{sRot}, 7")
    for j in range(4):
        a(f"s_add_u32 m0, s{sXd}, {XO + j*1024}")
        a(f"s_add_u32 s44, s{sKx}, {j*8192}")
        a(f"buffer_load_dwordx4 v{vXo if j%2==0 else vXo2}, {sr(sX,4)}, s44 offen lds")
    srd(a, sWQ, 6, 512 * 1536 * 2)
    srd(a, sW1, 8, 512 * 1376 * 2)
    for j in range(3):
        a(f"v_add_u32 v{vT0}, {j*64}, v{vLane}")
        a(f"v_mul_u32_u24 v{vT1}, 43691, v{vT0}")
        a(f"v_lshrrev_b32 v{vT1}, 19, v{vT1}")
        a(f"v_mul_u32_u24 v{vT2}, 12, v{vT1}")
        a(f"v_sub_u32 v{vT2}, v{vT0}, v{vT2}")
        a(f"s_lshl_b32 s44, s{sL}, 4")
        a(f"v_add_u32 v{vT1}, s44, v{vT1}")
        a(f"v_mul_u32_u24 v{vT3}, 3072, v{vT1}")
        a(f"v_lshrrev_b32 v{vT0}, 2, v{vT2}")
        a(f"v_lshl_add_u32 v{vT3}, v{vT0}, 10, v{vT3}")
        a(f"v_and_b32 v{vT0}, 3, v{vT2}")
        a(f"v_lshl_add_u32 v{vT3}, v{vT0}, 4, v{vT3}")
        a(f"s_lshl_b32 s44, s{sCG}, 6")
        a(f"v_add_u32 v{vWq[j]}, s44, v{vT3}")
        a(f"v_mul_u32_u24 v{vT3}, 2752, v{vT1}")
        a(f"v_lshl_add_u32 v{vT3}, v{vT2}, 4, v{vT3}")
        a(f"s_lshl_b32 s44, s{sHC}, 1")
        a(f"v_add_u32 v{vW1[j]}, s44, v{vT3}")
    def dma_stage(s):
        base = (s % NBUF) * STG
        a(f"s_add_u32 s44, s{sRot}, {s}")
        a("s_and_b32 s44, s44, 7")
        a(f"s_lshl_b32 s{sKx}, s44, 7")
        a(f"s_mul_i32 s{sKq}, s44, {64*3072}")
        a(f"s_mul_i32 s{sK1}, s44, {64*2752}")
        for j in range(4 if s else 0):
            a(f"s_add_u32 m0, s{sXd}, {base + XO + j*1024}")
            a(f"s_add_u32 s44, s{sKx}, {j*8192}")
            a(f"buffer_load_dwordx4 v{vXo if j%2==0 else vXo2}, {sr(sX,4)}, s44 offen lds")
        for j in range(3):
            a(f"s_add_u32 m0, s{sWd}, {base + WQO + j*1024}")
            a("s_nop 0")
            a(f"buffer_load_dwordx4 v{vWq[j]}, {sr(sWQ,4)}, s{sKq} offen lds")
        for j in range(3):
            a(f"s_add_u32 m0, s{sWd}, {base + W1O + j*1024}")
            a("s_nop 0")
            a(f"buffer_load_dwordx4 v{vW1[j]}, {sr(sW1,4)}, s{sK1} offen lds")
    dma_stage(0)
    for s in range(NST):
        if s + 1 < NST:
            dma_stage(s + 1)
            a("s_waitcnt vmcnt(10)")
        else:
            a("s_waitcnt vmcnt(0)")
        a("s_barrier")
    srd(a, sWS, 12, WS_SIZE)
    srd(a, sW2, 60, 1376 * 512 * 2)
    srd(a, sGW, 62, 512 * 2)
    srd(a, 64, 64, 512 * 512 * 2)
    a("s_lshl_b32 s44, s2, 2")
    a(f"s_add_u32 s44, s44, s{sL}")
    a(f"v_lshrrev_b32 v{vT0}, 5, v{vLane}")
    a(f"v_lshlrev_b32 v{vT0}, 12, v{vT0}")
    a(f"v_and_b32 v{vT1}, 31, v{vLane}")
    a(f"v_lshl_add_u32 v{vT0}, v{vT1}, 1, v{vT0}")
    a(f"v_lshlrev_b32 v{vT2}, 4, v{vLane}")
    a.lab("K1_TRLOOP")
    a("s_lshr_b32 s45, s44, 4")
    a("s_and_b32 s46, s44, 15")
    a("s_lshl_b32 s45, s45, 14")
    a("s_lshl_b32 s46, s46, 6")
    a("s_add_u32 s45, s45, s46")
    for j in range(8):
        ro = j if j < 4 else 8 + j - 4
        a(f"s_add_u32 s46, s45, {ro*1024}")
        a(f"buffer_load_ushort v{16+j}, v{vT0}, {sr(sW2,4)}, s46 offen")
    a("s_waitcnt vmcnt(0)")
    for p in range(4):
        a(f"v_lshl_or_b32 v{24+p}, v{16+2*p+1}, 16, v{16+2*p}")
    a("s_lshl_b32 s46, s44, 10")
    a(f"s_add_u32 s46, s46, {WS_W2T}")
    a(f"buffer_store_dwordx4 v[24:27], v{vT2}, {sr(sWS,4)}, s46 offen {WT}")
    a("s_add_u32 s44, s44, 1024")
    a("s_cmp_lt_u32 s44, 1376")
    a("s_cbranch_scc1 K1_TRLOOP")
    a("s_cmp_ge_u32 s44, 1888")
    a("s_cbranch_scc1 K1_TRDONE")
    a("s_sub_u32 s44, s44, 1376")
    a("s_lshr_b32 s45, s44, 4")
    a("s_and_b32 s46, s44, 15")
    a("s_lshl_b32 s45, s45, 14")
    a("s_lshl_b32 s46, s46, 6")
    a("s_add_u32 s45, s45, s46")
    for j in range(8):
        ro = j if j < 4 else 8 + j - 4
        a(f"s_add_u32 s46, s45, {ro*1024}")
        a(f"buffer_load_ushort v{16+j}, v{vT0}, s[64:67], s46 offen")
    a("s_waitcnt vmcnt(0)")
    for p in range(4):
        a(f"v_lshl_or_b32 v{24+p}, v{16+2*p+1}, 16, v{16+2*p}")
    a("s_lshl_b32 s46, s44, 10")
    a(f"s_add_u32 s46, s46, {WS_WOT}")
    a(f"buffer_store_dwordx4 v[24:27], v{vT2}, {sr(sWS,4)}, s46 offen {WT}")
    a.lab("K1_TRDONE")
    a(f"s_cmp_lg_u32 s{sL}, 0")
    a("s_cbranch_scc1 K1_END")
    a(f"s_lshl_b32 s44, s{sRB}, 7")
    a(f"s_lshl_b32 s45, s{sCG}, 3")
    a("s_add_u32 s44, s44, s45")
    a("s_lshl_b32 s45, s44, 10")
    for i in range(8):
        a(f"s_add_u32 s46, s45, {i*1024}")
        a(f"buffer_load_dwordx4 {vr(32+4*i,4)}, v{vT2}, {sr(sX,4)}, s46 offen")
    a(f"buffer_load_dwordx4 v[64:67], v{vT2}, {sr(sGW,4)}, 0 offen")
    a("s_waitcnt vmcnt(0)")
    for r in range(4):
        a(f"v_lshlrev_b32 v{68+2*r}, 16, v{64+r}")
        a(f"v_and_b32 v{68+2*r+1}, 0xffff0000, v{64+r}")
    for i in range(8):
        for r in range(4):
            a(f"v_lshlrev_b32 v{vT0}, 16, v{32+4*i+r}")
            a(f"v_and_b32 v{vT1}, 0xffff0000, v{32+4*i+r}")
            if r == 0:
                a(f"v_mul_f32 v{80+i}, v{vT0}, v{68}")
            else:
                a(f"v_fma_f32 v{80+i}, v{vT0}, v{68+2*r}, v{80+i}")
            a(f"v_fma_f32 v{80+i}, v{vT1}, v{68+2*r+1}, v{80+i}")
    for off in (0x041F, 0x081F, 0x101F, 0x201F, 0x401F):
        for i in range(8):
            a(f"ds_swizzle_b32 v{88+i}, v{80+i} offset:{off}")
        a("s_waitcnt lgkmcnt(0)")
        for i in range(8):
            a(f"v_add_f32 v{80+i}, v{80+i}, v{88+i}")
    for i in range(8):
        a(f"v_mov_b32 v{88+i}, v{80+i}")
    a("s_nop 1")
    for i in range(8):
        a(f"v_permlane32_swap_b32 v{80+i}, v{88+i}")
    for i in range(8):
        a(f"v_add_f32 v{80+i}, v{80+i}, v{88+i}")
    for i in range(8):
        a(f"v_mul_f32 v{80+i}, {f32hex(-LOG2E)}, v{80+i}")
    for i in range(8):
        a(f"v_exp_f32 v{80+i}, v{80+i}")
    a("s_nop 0")
    for i in range(8):
        a(f"v_add_f32 v{80+i}, 1.0, v{80+i}")
    for i in range(8):
        a(f"v_rcp_f32 v{80+i}, v{80+i}")
    a("s_lshl_b32 s45, s44, 2")
    a(f"s_add_u32 s45, s45, {WS_G}")
    a(f"v_mov_b32 v{vT0}, 0")
    a("s_mov_b64 exec, 1")
    a(f"buffer_store_dwordx4 v[80:83], v{vT0}, {sr(sWS,4)}, s45 offen")
    a(f"buffer_store_dwordx4 v[84:87], v{vT0}, {sr(sWS,4)}, s45 offen offset:16")
    a.lab("K1_END")
    a("s_endpgm")
    a.lab("K1_COMP")
    srd(a, sB1, 10, 1376 * 2)
    srd(a, sWS, 12, WS_SIZE)
    a(f"s_lshr_b32 s{sRT}, s{sW}, 1")
    a(f"s_lshr_b32 s44, s{sW}, 2")
    a(f"s_xor_b32 s44, s44, s{sW}")
    a(f"s_and_b32 s{sNH}, s44, 1")
    vXa0 = [14, 15, 16, 17]
    vWa0 = 18
    vXa = [19, 20, 21, 22]; vWa = 23
    a(f"v_and_b32 v{vT0}, 31, v{vLane}")
    a(f"v_lshrrev_b32 v{vT1}, 5, v{vLane}")
    a(f"v_lshrrev_b32 v{vT2}, 1, v{vT0}")
    a(f"v_and_b32 v{vT2}, 7, v{vT2}")
    a(f"s_lshl_b32 s44, s{sRT}, 5")
    a(f"v_add_u32 v{vT0}, s44, v{vT0}")
    a(f"v_lshlrev_b32 v{vT0}, 7, v{vT0}")
    for kk in range(4):
        a(f"v_add_u32 v{vT3}, {2*kk}, v{vT1}")
        a(f"v_xor_b32 v{vT3}, v{vT3}, v{vT2}")
        a(f"v_lshl_add_u32 v{vXa0[kk]}, v{vT3}, 4, v{vT0}")
    a(f"v_lshrrev_b32 v{vT0}, 5, v{vLane}")
    a(f"v_lshlrev_b32 v{vT0}, 3, v{vT0}")
    a(f"v_bfe_u32 v{vT1}, v{vLane}, 2, 2")
    a(f"v_add_u32 v{vT0}, v{vT0}, v{vT1}")
    a(f"v_mul_u32_u24 v{vT0}, 192, v{vT0}")
    a(f"v_bfe_u32 v{vT1}, v{vLane}, 4, 1")
    a(f"v_lshl_add_u32 v{vT0}, v{vT1}, 5, v{vT0}")
    a(f"v_and_b32 v{vT1}, 3, v{vLane}")
    a(f"v_lshl_add_u32 v{vWa0}, v{vT1}, 3, v{vT0}")

    XF = [24, 28]
    WF = [[32, 36, 40], [44, 48, 52]]
    ACC = 64
    def acc(t): return ACC + t * 16
    a(f"s_cmp_eq_u32 s{sNH}, 1")
    a("s_cbranch_scc1 K1_NH1")

    def set_stage_addr(s):
        base = (s % NBUF) * STG
        for kk in range(4):
            a(f"v_add_u32 v{vXa[kk]}, {base + XO}, v{vXa0[kk]}")
        a(f"v_add_u32 v{vWa}, {base + WQO}, v{vWa0}")

    def mainloop(nh):
        tiles = [(0, 0, 'T'), (0, 64, 'T'), (12288, 0, 'T')] if nh == 0 else [(0, 128, 'N'), (12288, 64, 'T'), (12288, 128, 'T')]
        def reads(kk, b):
            a(f"ds_read_b128 {vr(XF[b],4)}, v{vXa[kk]}")
            for t, (reg, col, _) in enumerate(tiles):
                for half in range(2):
                    a(f"ds_read_b64_tr_b16 {vr(WF[b][t]+2*half,2)}, v{vWa} offset:{reg + col + (16*kk + 4*half)*192}")
        st.n = 1
        hts = [0] if nh == 0 else [1, 2]
        a(f"v_lshrrev_b32 v{vT0}, 5, v{vLane}")
        a(f"v_lshlrev_b32 v{vT0}, 3, v{vT0}")
        for k, hti in enumerate(hts):
            a(f"s_add_u32 s47, s{sHC}, {32*hti}")
            a("s_lshl_b32 s49, s47, 1")
            for g in range(4):
                a(f"buffer_load_dwordx2 {vr(128+8*k+2*g,2)}, v{vT0}, {sr(sB1,4)}, s49 offen offset:{16*g}")
        a("s_barrier")
        st()
        set_stage_addr(0)
        reads(0, 0)
        steps = [(s, kk) for s in range(NST) for kk in range(4)]
        for i, (s, kk) in enumerate(steps):
            b = i % 2
            a("s_waitcnt lgkmcnt(0)")
            if kk == 3 and s < NST - 1:
                a("s_barrier")
                set_stage_addr(s + 1)
            if i + 1 < len(steps):
                reads(steps[i + 1][1], 1 - b)
            for t, (reg, col, ori) in enumerate(tiles):
                cc = "0" if i == 0 else vr(acc(t), 16)
                if ori == 'T':
                    a(f"v_mfma_f32_32x32x16_bf16 {vr(acc(t),16)}, {vr(WF[b][t],4)}, {vr(XF[b],4)}, {cc}")
                else:
                    a(f"v_mfma_f32_32x32x16_bf16 {vr(acc(t),16)}, {vr(XF[b],4)}, {vr(WF[b][t],4)}, {cc}")
        st()
        vA, vB = 24, 25
        PK = 28
        vL32, vH = 26, 27
        BI = 40; BU = 48; TMP = list(range(112, 128))
        a(f"v_and_b32 v{vL32}, 31, v{vLane}")
        a(f"v_lshrrev_b32 v{vH}, 5, v{vLane}")
        a(f"s_lshl_b32 s44, s{sRB}, 2")
        a(f"s_add_u32 s46, s44, s{sRT}")
        a(f"v_lshlrev_b32 v{vA}, 4, v{vLane}")
        a("s_waitcnt vmcnt(0)")
        a("s_nop 7")
        def qk_store(t, wsbase, scale):
            r0 = acc(t)
            if scale:
                for r in range(16):
                    a(f"v_mul_f32 v{r0+r}, {f32hex(0.25*LOG2E)}, v{r0+r}")
            for p in range(8):
                a(f"v_cvt_pk_bf16_f32 v{PK+p}, v{r0+2*p}, v{r0+2*p+1}")
            a(f"s_lshl_b32 s47, s{sCG}, 17")
            a("s_lshl_b32 s48, s46, 10")
            a("s_add_u32 s47, s47, s48")
            a(f"s_add_u32 s47, s47, {wsbase}")
            a(f"buffer_store_dwordx4 {vr(PK,4)}, v{vA}, {sr(sWS,4)}, s47 offen {WT}")
            a("s_add_u32 s47, s47, 65536")
            a(f"buffer_store_dwordx4 {vr(PK+4,4)}, v{vA}, {sr(sWS,4)}, s47 offen {WT}")
            a("s_nop 1")
        def v_store(t):
            a(f"v_lshrrev_b32 v{vB}, 4, v{vL32}")
            a(f"v_lshlrev_b32 v{vB}, 16, v{vB}")
            a(f"v_lshl_add_u32 v{vB}, v{vH}, 8, v{vB}")
            a(f"v_and_b32 v{vT0}, 15, v{vL32}")
            a(f"v_lshl_add_u32 v{vB}, v{vT0}, 4, v{vB}")
            r0 = acc(t)
            for p in range(8):
                a(f"v_cvt_pk_bf16_f32 v{PK+p}, v{r0+2*p}, v{r0+2*p+1}")
            a(f"s_lshl_b32 s47, s{sCG}, 17")
            a("s_lshl_b32 s48, s46, 10")
            a("s_add_u32 s47, s47, s48")
            a(f"s_add_u32 s47, s47, {WS_V}")
            a(f"buffer_store_dwordx4 {vr(PK,4)}, v{vB}, {sr(sWS,4)}, s47 offen {WT}")
            a(f"buffer_store_dwordx4 {vr(PK+4,4)}, v{vB}, {sr(sWS,4)}, s47 offen offset:512 {WT}")
            a("s_nop 1")
        def h_store(t, hti):
            a(f"s_add_u32 s47, s{sHC}, {32*hti}")
            BI = 128 + 8 * hts.index(hti)
            for g in range(4):
                for d in range(2):
                    a(f"v_lshlrev_b32 v{BU+4*g+2*d}, 16, v{BI+2*g+d}")
                    a(f"v_and_b32 v{BU+4*g+2*d+1}, 0xffff0000, v{BI+2*g+d}")
            r0 = acc(t)
            for hf in range(2):
                mish_block(a, [r0 + 8*hf + i for i in range(8)], [BU + 8*hf + i for i in range(8)], TMP)
            for p in range(8):
                a(f"v_cvt_pk_bf16_f32 v{PK+p}, v{r0+2*p}, v{r0+2*p+1}")
            a("s_mul_i32 s48, s46, 86")
            a("s_lshr_b32 s49, s47, 4")
            a("s_add_u32 s48, s48, s49")
            a("s_lshl_b32 s48, s48, 10")
            a(f"s_add_u32 s48, s48, {WS_ACT}")
            a(f"buffer_store_dwordx4 {vr(PK,4)}, v{vA}, {sr(sWS,4)}, s48 offen")
            a(f"buffer_store_dwordx4 {vr(PK+4,4)}, v{vA}, {sr(sWS,4)}, s48 offen offset:1024")
            a("s_nop 1")
        if nh == 0:
            qk_store(0, WS_Q, True)
            qk_store(1, WS_K, False)
            h_store(2, 0)
        else:
            v_store(0)
            h_store(1, 1)
            a(f"s_cmp_ge_u32 s{sCG}, 11")
            a(f"s_cbranch_scc1 K1_SKIP2")
            h_store(2, 2)
            a.lab("K1_SKIP2")
        st()
        if STAMP: a("s_waitcnt vmcnt(0)")
        st()
        st.dump(sWS, sW, 12)
        a("s_endpgm")
    mainloop(0)
    a.lab("K1_NH1")
    mainloop(1)

    kernel_desc(a, name, 144)

def gen_k2(a):
    name = "attn_kernel"
    kernel_header(a, name)
    sWS = 16
    sHead, sQC, sW = 20, 21, 22
    sMaskLo = 24
    sFlag = 26
    KL = 0; VL = 65536; FL = 131072; RB = 131072 + 256
    CH = [0, 4, 16, 32, 48]
    a("s_cmp_ge_u32 s2, 256")
    a("s_cbranch_scc1 K2_END")
    a("s_load_dwordx2 s[12:13], s[0:1], 80")
    a("s_and_b32 s44, s2, 7")
    a("s_lshr_b32 s45, s2, 3")
    a("s_lshl_b32 s44, s44, 2")
    a("s_and_b32 s46, s45, 3")
    a(f"s_add_u32 s{sHead}, s44, s46")
    a(f"s_lshr_b32 s{sQC}, s45, 2")
    vLane, vT0, vT1, vT2 = 1, 2, 3, 4
    a(f"v_and_b32 v{vLane}, 63, v0")
    a(f"v_lshrrev_b32 v{vT0}, 6, v0")
    a("s_nop 0")
    a(f"v_readfirstlane_b32 s{sW}, v{vT0}")
    a("s_waitcnt lgkmcnt(0)")
    srd(a, sWS, 12, WS_SIZE)
    vL16 = 5
    st = Stamps(a, 1); st()
    a(f"v_lshlrev_b32 v{vL16}, 4, v{vLane}")
    a(f"s_lshl_b32 s44, s{sHead}, 16")
    a(f"s_cmp_lt_u32 s{sW}, 8")
    a("s_cbranch_scc1 K2_ATT")
    sL = 23
    a(f"s_sub_u32 s{sL}, s{sW}, 8")
    vFl = 6; vOne = 7
    a(f"v_mov_b32 v{vFl}, {FL}")
    a(f"v_mov_b32 v{vOne}, 1")
    a(f"s_lshl_b32 s45, s{sL}, 10")
    a("s_add_u32 s46, s44, s45")
    def issue_chunk(c):
        t0 = CH[c]; t1 = CH[c + 1] if c + 1 < len(CH) else 64
        for (wsb, ldsb) in ((WS_K, KL), (WS_V, VL)):
            for i in range((t1 - t0) // 4):
                a(f"s_add_u32 m0, s45, {ldsb + t0*1024 + i*4096}")
                a(f"s_add_u32 s47, s46, {wsb + t0*1024 + i*4096}")
                a(f"buffer_load_dwordx4 v{vL16}, {sr(sWS,4)}, s47 offen lds")
        return (t1 - t0) // 2
    def signal(c):
        a("s_mov_b64 exec, 1")
        a(f"ds_add_u32 v{vFl}, v{vOne} offset:{4*c}")
        a("s_mov_b64 exec, -1")
    st.n = 1
    issue_chunk(0)
    a(f"v_mov_b32 v{vT1}, 0")
    a(f"v_lshl_add_u32 v{vT0}, v{vLane}, 2, v{vFl}")
    a(f"ds_write_b32 v{vT0}, v{vT1}")
    for c in range(1, len(CH)):
        n = issue_chunk(c)
        if c == 1:
            a("s_waitcnt lgkmcnt(0)")
            a("s_barrier")
        a(f"s_waitcnt vmcnt({n})"); signal(c - 1)
    a("s_waitcnt vmcnt(0)"); signal(len(CH) - 1)
    st()
    ACC = 64
    FR = [8, 24, 40]
    sA, sB = 27, 28
    a(f"s_mul_i32 s47, s{sL}, 21")
    a(f"s_lshl_b32 s48, s{sHead}, 1")
    a("s_mul_i32 s48, s48, 86")
    a("s_add_u32 s48, s48, s47")
    a("s_lshl_b32 s48, s48, 10")
    a(f"s_add_u32 s{sA}, s48, {WS_ACT}")
    a("s_lshl_b32 s48, s47, 4")
    a(f"s_lshl_b32 s49, s{sQC}, 1")
    a("s_add_u32 s48, s48, s49")
    a("s_lshl_b32 s48, s48, 10")
    a(f"s_add_u32 s{sB}, s48, {WS_W2T}")
    def gl(i, fr):
        a(f"s_add_u32 s47, s{sA}, {i*1024}")
        a(f"buffer_load_dwordx4 {vr(fr,4)}, v{vL16}, {sr(sWS,4)}, s47 offen")
        a(f"s_add_u32 s47, s{sA}, {i*1024 + 86*1024}")
        a(f"buffer_load_dwordx4 {vr(fr+4,4)}, v{vL16}, {sr(sWS,4)}, s47 offen")
        a(f"s_add_u32 s47, s{sB}, {i*16384}")
        a(f"buffer_load_dwordx4 {vr(fr+8,4)}, v{vL16}, {sr(sWS,4)}, s47 offen")
        a(f"buffer_load_dwordx4 {vr(fr+12,4)}, v{vL16}, {sr(sWS,4)}, s47 offen offset:1024")
    def mm(fr, first):
        for aa in range(2):
            for bb in range(2):
                d = ACC + (aa * 2 + bb) * 16
                cc = "0" if first else vr(d, 16)
                a(f"v_mfma_f32_32x32x16_bf16 {vr(d,16)}, {vr(fr+8+4*bb,4)}, {vr(fr+4*aa,4)}, {cc}")
    NK = 21
    gl(0, FR[0]); gl(1, FR[1])
    for i in range(NK):
        if i + 2 < NK:
            gl(i + 2, FR[(i + 2) % 3])
            a("s_waitcnt vmcnt(8)")
        elif i + 1 < NK:
            a("s_waitcnt vmcnt(4)")
        else:
            a("s_waitcnt vmcnt(0)")
        mm(FR[i % 3], i == 0)
    a(f"s_cmp_ge_u32 s{sL}, 2")
    a("s_cbranch_scc1 K2_NOX")
    a(f"s_mul_i32 s48, s{sL}, 20")
    a("s_sub_u32 s48, 84, s48")
    a("s_lshl_b32 s49, s48, 10")
    a(f"s_add_u32 s{sA}, s{sA}, s49")
    a("s_lshl_b32 s49, s48, 14")
    a(f"s_add_u32 s{sB}, s{sB}, s49")
    gl(0, FR[0])
    a("s_waitcnt vmcnt(0)")
    mm(FR[0], False)
    a.lab("K2_NOX")
    a("s_nop 15")
    st()
    vRa = 8
    a(f"v_add_u32 v{vRa}, {RB}, v{vL16}")
    a(f"s_cmp_eq_u32 s{sL}, 3")
    a("s_cbranch_scc1 K2_RW")
    a(f"s_sub_u32 s48, 3, s{sL}")
    a.lab("K2_RSPIN")
    a(f"ds_read_b32 v{vT0}, v{vFl} offset:32")
    a("s_waitcnt lgkmcnt(0)")
    a(f"v_readfirstlane_b32 s47, v{vT0}")
    a("s_nop 3")
    a("s_cmp_ge_u32 s47, s48")
    a("s_cbranch_scc1 K2_RGO")
    a("s_sleep 4")
    a("s_branch K2_RSPIN")
    a.lab("K2_RGO")
    for half in range(2):
        for i in range(8):
            a(f"ds_read_b128 {vr(12+4*i,4)}, v{vRa} offset:{(8*half+i)*1024}")
        a("s_waitcnt lgkmcnt(0)")
        for i in range(32):
            a(f"v_add_f32 v{ACC+32*half+i}, v{ACC+32*half+i}, v{12+i}")
    a(f"s_cmp_eq_u32 s{sL}, 0")
    a("s_cbranch_scc1 K2_RST")
    a.lab("K2_RW")
    for i in range(16):
        a(f"ds_write_b128 v{vRa}, {vr(ACC+4*i,4)} offset:{i*1024}")
    a("s_waitcnt lgkmcnt(0)")
    a("s_mov_b64 exec, 1")
    a(f"ds_add_u32 v{vFl}, v{vOne} offset:32")
    a("s_waitcnt lgkmcnt(0)")
    a("s_mov_b64 exec, -1")
    st(); st(); st()
    st.dump(sWS, sW, 12)
    a("s_endpgm")
    a.lab("K2_RST")
    st.n = 3
    for aa in range(2):
        for bb in range(2):
            a(f"s_lshl_b32 s47, s{sHead}, 1")
            a(f"s_add_u32 s47, s47, {aa}")
            a("s_lshl_b32 s47, s47, 4")
            a(f"s_lshl_b32 s48, s{sQC}, 1")
            a("s_add_u32 s47, s47, s48")
            a(f"s_add_u32 s47, s47, {bb}")
            a("s_lshl_b32 s47, s47, 11")
            a(f"s_add_u32 s47, s47, {WS_B}")
            d0 = ACC + (aa*2+bb)*16
            for p in range(8):
                a(f"v_cvt_pk_bf16_f32 v{d0+p}, v{d0+2*p}, v{d0+2*p+1}")
            for i in range(2):
                a(f"buffer_store_dwordx4 {vr(d0+4*i,4)}, v{vL16}, {sr(sWS,4)}, s47 offen offset:{i*1024} {WT}")
    st(); st(); st()
    st.dump(sWS, sW, 12)
    a.lab("K2_END")
    a("s_endpgm")
    a.lab("K2_ATT")
    st.n = 1
    QF = 8
    a(f"s_lshl_b32 s47, s{sQC}, 3")
    a(f"s_add_u32 s47, s47, s{sW}")
    a("s_lshl_b32 s47, s47, 10")
    a("s_add_u32 s47, s47, s44")
    a(f"s_add_u32 s47, s47, {WS_Q}")
    a(f"buffer_load_dwordx4 {vr(QF,4)}, v{vL16}, {sr(sWS,4)}, s47 offen")
    MN = 16
    S = [32, 48]
    O = 64
    P = 80
    KF = [88, 92, 96]
    VF = [100, 104, 108, 112]
    vKa, vVa = 6, 7
    vRun = 12; vFl = 13
    a(f"v_mov_b32 v{vFl}, {FL}")
    a(f"v_mov_b32 v{vT1}, 0")
    a(f"v_and_b32 v{vT0}, 31, v{vLane}")
    a(f"v_mov_b32 v{vT2}, 0x3f803f80")
    a(f"v_and_b32 v14, 27, v{vT0}")
    a("v_cmp_eq_u32 vcc, 16, v14")
    a("s_nop 1")
    a(f"v_cndmask_b32 v{vT1}, v{vT1}, v{vT2}, vcc")
    for b in VF:
        for r in range(4):
            a(f"v_mov_b32 v{b+r}, v{vT1}")
    a(f"v_cmp_gt_u32 vcc, 16, v{vT0}")
    a("s_nop 1")
    a(f"s_mov_b64 {sr(sMaskLo,2)}, vcc")
    a(f"v_mov_b32 v{vKa}, v{vL16}")
    a(f"v_lshrrev_b32 v{vT1}, 5, v{vLane}")
    a(f"v_lshlrev_b32 v{vT1}, 8, v{vT1}")
    a(f"v_and_b32 v{vT2}, 15, v{vLane}")
    a(f"v_lshl_add_u32 v{vVa}, v{vT2}, 4, v{vT1}")
    a(f"v_add_u32 v{vVa}, {VL}, v{vVa}")
    lc = [0]
    def wait_chunk(c):
        lc[0] += 1
        lb = f"K2_WC{lc[0]}"
        a.lab(lb)
        a(f"ds_read_b32 v{vT0}, v{vFl} offset:{4*c}")
        a("s_waitcnt lgkmcnt(0)")
        a(f"v_readfirstlane_b32 s47, v{vT0}")
        a("s_nop 3")
        a("s_cmp_ge_u32 s47, 4")
        a(f"s_cbranch_scc1 {lb}D")
        a("s_sleep 2")
        a(f"s_branch {lb}")
        a.lab(lb + "D")
    a("s_barrier")
    st()
    wait_chunk(0)
    a("s_waitcnt vmcnt(0)")
    st()
    a(f"ds_read_b128 {vr(KF[0],4)}, v{vKa}")
    a("s_waitcnt lgkmcnt(0)")
    a(f"v_mfma_f32_32x32x16_bf16 {vr(S[0],16)}, {vr(KF[0],4)}, {vr(QF,4)}, 0")
    a("s_nop 15")
    a(f"v_max3_f32 v{vRun}, v{S[0]}, v{S[0]+1}, v{S[0]+2}")
    for r in range(3, 15, 2):
        a(f"v_max3_f32 v{vRun}, v{vRun}, v{S[0]+r}, v{S[0]+r+1}")
    a(f"v_max_f32 v{vRun}, v{vRun}, v{S[0]+15}")
    a(f"v_mov_b32 v{vT1}, v{vRun}")
    a("s_nop 1")
    a(f"v_permlane32_swap_b32 v{vRun}, v{vT1}")
    a(f"v_max_f32 v{vRun}, v{vRun}, v{vT1}")
    a(f"v_sub_f32 v{vRun}, 0, v{vRun}")
    for r in range(16):
        a(f"v_mov_b32 v{MN+r}, v{vRun}")
    a(f"s_mov_b32 s{sFlag}, 0")
    st()
    NT = 64
    a.lab("K2_PASS2")
    def rdK(t):
        a(f"ds_read_b128 {vr(KF[t%3],4)}, v{vKa} offset:{t*1024}")
    def rdV(t):
        a(f"s_mov_b64 exec, {sr(sMaskLo,2)}")
        for g in range(2):
            a(f"ds_read_b128 {vr(VF[(t%2)*2+g],4)}, v{vVa} offset:{(2*t+g)*512}")
        a("s_mov_b64 exec, -1")
    rdK(0); rdK(1); rdV(0)
    a("s_waitcnt lgkmcnt(0)")
    a(f"v_mfma_f32_32x32x16_bf16 {vr(S[0],16)}, {vr(KF[0],4)}, {vr(QF,4)}, {vr(MN,16)}")
    a("s_nop 7")
    for t in range(NT):
        sb = S[t % 2]
        if (t + 2) in CH[1:]:
            wait_chunk(CH.index(t + 2))
        if t + 2 < NT: rdK(t + 2)
        if t + 1 < NT: rdV(t + 1)
        nout = (1 if t + 2 < NT else 0) + (2 if t + 1 < NT else 0)
        a(f"s_waitcnt lgkmcnt({nout})")
        if t + 1 < NT:
            a(f"v_mfma_f32_32x32x16_bf16 {vr(S[(t+1)%2],16)}, {vr(KF[(t+1)%3],4)}, {vr(QF,4)}, {vr(MN,16)}")
        for g in range(2):
            for r in range(8):
                a(f"v_exp_f32 v{sb+8*g+r}, v{sb+8*g+r}")
            for p in range(4):
                a(f"v_cvt_pk_bf16_f32 v{P+4*g+p}, v{sb+8*g+2*p}, v{sb+8*g+2*p+1}")
            a("s_nop 1")
            cc = "0" if (t == 0 and g == 0) else vr(O, 16)
            a(f"v_mfma_f32_32x32x16_bf16 {vr(O,16)}, {vr(VF[(t%2)*2+g],4)}, {vr(P+4*g,4)}, {cc}")
    a("s_nop 15")
    a(f"s_cmp_eq_u32 s{sFlag}, 1")
    a("s_cbranch_scc1 K2_EPI")
    a(f"v_cmp_ngt_f32 vcc, {f32hex(2.0**60)}, v{O+8}")
    a("s_nop 4")
    a("s_cmp_eq_u64 vcc, 0")
    a("s_cbranch_scc1 K2_EPI")
    a(f"v_mov_b32 v{vRun}, 0xff800000")
    a("s_mov_b32 s47, 0")
    a(f"v_mov_b32 v{vT0}, v{vKa}")
    a.lab("K2_P1LOOP")
    a(f"ds_read_b128 {vr(KF[0],4)}, v{vT0}")
    a("s_waitcnt lgkmcnt(0)")
    a(f"v_mfma_f32_32x32x16_bf16 {vr(S[0],16)}, {vr(KF[0],4)}, {vr(QF,4)}, 0")
    a("s_nop 15")
    for r in range(0, 16, 2):
        a(f"v_max3_f32 v{vRun}, v{vRun}, v{S[0]+r}, v{S[0]+r+1}")
    a(f"v_add_u32 v{vT0}, 1024, v{vT0}")
    a("s_add_u32 s47, s47, 1")
    a("s_cmp_lt_u32 s47, 64")
    a("s_cbranch_scc1 K2_P1LOOP")
    a(f"v_mov_b32 v{vT1}, v{vRun}")
    a("s_nop 1")
    a(f"v_permlane32_swap_b32 v{vRun}, v{vT1}")
    a(f"v_max_f32 v{vRun}, v{vRun}, v{vT1}")
    a(f"v_sub_f32 v{vRun}, 0, v{vRun}")
    for r in range(16):
        a(f"v_mov_b32 v{MN+r}, v{vRun}")
    a(f"s_mov_b32 s{sFlag}, 1")
    a("s_branch K2_PASS2")
    a.lab("K2_EPI")
    st()
    a(f"v_rcp_f32 v{vT0}, v{O+8}")
    a("s_nop 0")
    for r in range(8):
        a(f"v_mul_f32 v{O+r}, v{O+r}, v{vT0}")
    for p in range(4):
        a(f"v_cvt_pk_bf16_f32 v{P+p}, v{O+2*p}, v{O+2*p+1}")
    a(f"s_lshl_b32 s47, s{sQC}, 3")
    a(f"s_add_u32 s47, s47, s{sW}")
    a("s_lshl_b32 s47, s47, 5")
    a(f"s_add_u32 s47, s47, s{sHead}")
    a("s_lshl_b32 s47, s47, 10")
    a(f"s_add_u32 s47, s47, {WS_O}")
    a(f"buffer_store_dwordx4 {vr(P,4)}, v{vL16}, {sr(sWS,4)}, s47 offen")
    if STAMP: a("s_waitcnt vmcnt(0)")
    st()
    st.dump(sWS, sW, 12)
    a("s_endpgm")

    kernel_desc(a, name, 128)

def gen_k3(a):
    name = "out_kernel"
    kernel_header(a, name)
    sWS, sOut = 16, 36
    sRB, sCB, sW, sWM, sWN = 40, 41, 42, 43, 49
    a("s_cmp_ge_u32 s2, 256")
    a("s_cbranch_scc1 K3_END")
    a("s_load_dwordx2 s[12:13], s[0:1], 64")
    a("s_load_dwordx2 s[14:15], s[0:1], 80")
    a("s_and_b32 s44, s2, 7")
    a("s_lshr_b32 s45, s2, 3")
    a("s_lshl_b32 s44, s44, 2")
    a("s_and_b32 s46, s45, 3")
    a(f"s_add_u32 s{sRB}, s44, s46")
    a(f"s_lshr_b32 s{sCB}, s45, 2")
    vLane, vT0, vT1, vL16 = 1, 2, 3, 4
    a(f"v_and_b32 v{vLane}, 63, v0")
    a(f"v_lshrrev_b32 v{vT0}, 6, v0")
    a(f"v_lshlrev_b32 v{vL16}, 4, v{vLane}")
    a(f"v_readfirstlane_b32 s{sW}, v{vT0}")
    a("s_waitcnt lgkmcnt(0)")
    srd(a, sWS, 14, WS_SIZE)
    srd(a, sOut, 12, 2048 * 512 * 2)
    st = Stamps(a, 2); st()
    a(f"s_lshr_b32 s{sWM}, s{sW}, 1")
    a(f"s_and_b32 s{sWN}, s{sW}, 1")
    FR = 96
    ACC = 32
    BB = 8
    vTok = 5; vG = 6
    a(f"s_lshl_b32 s44, s{sRB}, 6")
    a(f"s_lshl_b32 s45, s{sW}, 3")
    a("s_add_u32 s44, s44, s45")
    a("s_lshl_b32 s44, s44, 10")
    a(f"s_add_u32 s44, s44, {WS_O}")
    a(f"s_lshl_b32 s45, s{sW}, 7")
    a(f"s_lshl_b32 s46, s{sCB}, 1")
    a("s_add_u32 s45, s45, s46")
    a("s_lshl_b32 s45, s45, 10")
    a(f"s_add_u32 s45, s45, {WS_WOT}")
    for i in range(8):
        fr = FR + 16 * i
        a(f"s_add_u32 s46, s44, {i*1024}")
        a(f"buffer_load_dwordx4 {vr(fr,4)}, v{vL16}, {sr(sWS,4)}, s46 offen")
        a(f"s_add_u32 s46, s44, {i*1024 + 32768}")
        a(f"buffer_load_dwordx4 {vr(fr+4,4)}, v{vL16}, {sr(sWS,4)}, s46 offen")
        a(f"s_add_u32 s46, s45, {i*16384}")
        a(f"buffer_load_dwordx4 {vr(fr+8,4)}, v{vL16}, {sr(sWS,4)}, s46 offen")
        a(f"buffer_load_dwordx4 {vr(fr+12,4)}, v{vL16}, {sr(sWS,4)}, s46 offen offset:1024")
    a(f"v_and_b32 v{vT0}, 31, v{vLane}")
    a(f"s_lshl_b32 s44, s{sRB}, 6")
    a(f"s_lshl_b32 s45, s{sWM}, 5")
    a("s_add_u32 s44, s44, s45")
    a(f"v_add_u32 v{vTok}, s44, v{vT0}")
    a(f"v_lshlrev_b32 v{vT0}, 2, v{vTok}")
    a(f"s_mov_b32 s44, {WS_G}")
    a(f"buffer_load_dword v{vG}, v{vT0}, {sr(sWS,4)}, s44 offen")
    a(f"s_lshl_b32 s47, s{sRB}, 1")
    a(f"s_add_u32 s47, s47, s{sWM}")
    a("s_lshl_b32 s47, s47, 4")
    a(f"s_lshl_b32 s48, s{sCB}, 1")
    a("s_add_u32 s47, s47, s48")
    a(f"s_add_u32 s47, s47, s{sWN}")
    a("s_lshl_b32 s47, s47, 11")
    a(f"s_add_u32 s47, s47, {WS_B}")
    for i in range(2):
        a(f"buffer_load_dwordx4 {vr(BB+8+4*i,4)}, v{vL16}, {sr(sWS,4)}, s47 offen offset:{i*1024}")
    st()
    for i in range(8):
        fr = FR + 16 * i
        a(f"s_waitcnt vmcnt({3 + 4*(7-i)})")
        if i == 0: st()
        for aa in range(2):
            for bb in range(2):
                d = ACC + (aa * 2 + bb) * 16
                cc = "0" if i == 0 else vr(d, 16)
                a(f"v_mfma_f32_32x32x16_bf16 {vr(d,16)}, {vr(fr+8+4*bb,4)}, {vr(fr+4*aa,4)}, {cc}")
    st()
    a(f"s_lshl_b32 s44, s{sW}, 12")
    a(f"v_add_u32 v{vT0}, s44, v{vL16}")
    a("s_nop 15")
    for own in range(4):
        a(f"s_cmp_eq_u32 s{sW}, {own}")
        a(f"s_cbranch_scc1 K3_SK{own}")
        for i in range(4):
            a(f"ds_write_b128 v{vT0}, {vr(ACC+16*own+4*i,4)} offset:{own*16384 + i*1024}")
        a.lab(f"K3_SK{own}")
    for own in range(4):
        a(f"s_cmp_lg_u32 s{sW}, {own}")
        a(f"s_cbranch_scc1 K3_MV{own}")
        for r in range(16):
            a(f"v_mov_b32 v{FR+r}, v{ACC+16*own+r}")
        a.lab(f"K3_MV{own}")
    a("s_waitcnt lgkmcnt(0)")
    a("s_barrier")
    a(f"s_lshl_b32 s44, s{sW}, 14")
    a(f"v_add_u32 v{vT0}, s44, v{vL16}")
    for src in range(4):
        for i in range(4):
            a(f"ds_read_b128 {vr(ACC+16*src+4*i,4)}, v{vT0} offset:{src*4096 + i*1024}")
    a("s_waitcnt vmcnt(0)")
    for p in range(8):
        a(f"v_lshlrev_b32 v{BB+2*p}, 16, v{BB+8+p}")
        a(f"v_and_b32 v{BB+2*p+1}, 0xffff0000, v{BB+8+p}")
    a("s_waitcnt lgkmcnt(0)")
    for src in range(4):
        a(f"s_cmp_eq_u32 s{sW}, {src}")
        a(f"s_cbranch_scc1 K3_AD{src}")
        for r in range(16):
            a(f"v_add_f32 v{FR+r}, v{FR+r}, v{ACC+16*src+r}")
        a.lab(f"K3_AD{src}")
    for r in range(16):
        a(f"v_sub_f32 v{FR+r}, v{FR+r}, v{BB+r}")
    for r in range(16):
        a(f"v_fma_f32 v{FR+r}, v{vG}, v{FR+r}, v{BB+r}")
    for p in range(8):
        a(f"v_cvt_pk_bf16_f32 v{BB+p}, v{FR+2*p}, v{FR+2*p+1}")
    a("s_nop 1")
    a(f"v_permlane32_swap_b32 v{BB}, v{BB+2}")
    a(f"v_permlane32_swap_b32 v{BB+1}, v{BB+3}")
    a(f"v_permlane32_swap_b32 v{BB+4}, v{BB+6}")
    a(f"v_permlane32_swap_b32 v{BB+5}, v{BB+7}")
    a(f"v_lshlrev_b32 v{vT0}, 10, v{vTok}")
    a(f"v_lshrrev_b32 v{vT1}, 5, v{vLane}")
    a(f"v_lshl_add_u32 v{vT0}, v{vT1}, 4, v{vT0}")
    a(f"s_lshl_b32 s44, s{sCB}, 7")
    a(f"s_lshl_b32 s45, s{sWN}, 6")
    a("s_add_u32 s44, s44, s45")
    a(f"buffer_store_dwordx4 {vr(BB,4)}, v{vT0}, {sr(sOut,4)}, s44 offen")
    a(f"buffer_store_dwordx4 {vr(BB+4,4)}, v{vT0}, {sr(sOut,4)}, s44 offen offset:32")
    st()
    if STAMP: a("s_waitcnt vmcnt(0)")
    st()
    st.dump(sWS, sW, 4)
    a.lab("K3_END")
    a("s_endpgm")
    kernel_desc(a, name, 224)

def main():
    a = A()
    hdr = open(f"cdna_kernels/{NAME}.s.ref").read().splitlines()
    for ln in hdr:
        if ln.startswith("; @launch") or ln.startswith("; Override") or ln.startswith("; grid=ceil"):
            continue
        if not ln.startswith(";"):
            break
        a.raw(ln)
    a.raw("; @launch kernel=proj_kernel grid=(256,1,1) block=(768,1,1) lds=122880")
    a.raw("; @launch kernel=attn_kernel grid=(256,1,1) block=(768,1,1) lds=147712")
    a.raw("; @launch kernel=out_kernel grid=(256,1,1) block=(256,1,1) lds=65536")
    a.raw('.amdgcn_target "amdgcn-amd-amdhsa--gfx950"')
    gen_k1(a)
    gen_k2(a)
    gen_k3(a)
    out = sys.argv[1] if len(sys.argv) > 1 else f"cdna_kernels/{NAME}.s"
    open(out, "w").write("\n".join(a.l) + "\n")
main()
```

```python
import sys
NAME = "gated_mix__softmax_full_mha__dense_activation_mish__prompt"

WS_Q = 0
WS_K = 2 << 20
WS_V = 4 << 20
WS_ACT = 6 << 20
WS_O = 12 << 20
WS_G = 14 << 20
WS_B = 16 << 20
WS_W2T = 20 << 20
WS_WOT = 22 << 20
WS_SIZE = 268435456
LOG2E = 1.4426950408889634

import struct
def f32hex(x):
    return "0x%08x" % struct.unpack("<I", struct.pack("<f", x))[0]

import os
STFLAGS = os.environ.get("STFLAGS", "")
WT = os.environ.get("WT", "sc1")
ROTATE = int(os.environ.get("ROTATE", "1"))
MAP84 = int(os.environ.get("MAP84", "1"))
class A:
    def __init__(self):
        self.l = []
    def __call__(self, s):
        if STFLAGS and s.startswith("buffer_store"):
            s = s + " " + STFLAGS
        self.l.append("    " + s)
    def lab(self, s):
        self.l.append(s + ":")
    def raw(self, s):
        self.l.append(s)
    def c(self, s):
        self.l.append("    ; " + s)

def vr(b, n=1):
    return f"v{b}" if n == 1 else f"v[{b}:{b+n-1}]"
def sr(b, n=1):
    return f"s{b}" if n == 1 else f"s[{b}:{b+n-1}]"

def srd(a, dst, ptr, size):
    a(f"s_mov_b32 s{dst}, s{ptr}")
    a(f"s_and_b32 s{dst+1}, s{ptr+1}, 0xffff")
    a(f"s_mov_b32 s{dst+2}, {size}")
    a(f"s_mov_b32 s{dst+3}, 0x00020000")

def kernel_header(a, name):
    a.raw(".text")
    a.raw(f".globl {name}")
    a.raw(".p2align 8")
    a.raw(f".type {name},@function")
    a.lab(name)

def kernel_desc(a, name, vgpr, sgpr=102, accum=None):
    if accum is None:
        accum = (vgpr + 3) // 4 * 4
    a.raw('.section .rodata,"a"')
    a.raw(".p2align 6")
    a.raw(f".amdhsa_kernel {name}")
    a.raw(f"  .amdhsa_next_free_vgpr {vgpr}")
    a.raw(f"  .amdhsa_next_free_sgpr {sgpr}")
    a.raw(f"  .amdhsa_accum_offset {accum}")
    a.raw("  .amdhsa_group_segment_fixed_size 0")
    a.raw("  .amdhsa_kernarg_size 88")
    a.raw("  .amdhsa_user_sgpr_count 2")
    a.raw("  .amdhsa_user_sgpr_kernarg_segment_ptr 1")
    a.raw("  .amdhsa_system_sgpr_workgroup_id_x 1")
    a.raw(".end_amdhsa_kernel")

import os
STAMP = int(os.environ.get("STAMP", "0"))
WS_DBG = 24 << 20
class Stamps:
    def __init__(self, a, kid):
        self.a = a; self.n = 0; self.kid = kid
    def __call__(self):
        if not STAMP: return
        if self.n == 0: self.a("s_memrealtime s[96:97]")
        self.a(f"s_memtime s[{70+2*self.n}:{71+2*self.n}]")
        self.n += 1
    def dump(self, sWS, sWave, nwaves):
        if not STAMP: return
        a = self.a
        a("s_memrealtime s[98:99]")
        a("s_waitcnt lgkmcnt(0)")
        a(f"s_mul_i32 s68, s2, {nwaves}")
        a(f"s_add_u32 s68, s68, s{sWave}")
        a("s_lshl_b32 s68, s68, 7")
        a(f"s_add_u32 s68, s68, {WS_DBG + self.kid * (1 << 20)}")
        a("v_mov_b32 v2, 0")
        for i in range(self.n):
            a(f"v_mov_b32 v3, s{70+2*i}")
            a(f"buffer_store_dword v3, v2, {sr(sWS,4)}, s68 offen offset:{4*i}")
        for i, sg in ((30, 96), (31, 98)):
            a(f"v_mov_b32 v3, s{sg}")
            a(f"buffer_store_dword v3, v2, {sr(sWS,4)}, s68 offen offset:{4*i}")

def mish_block(a, regs, bias, tmp):
    n = len(regs)
    t = tmp[:n]; u = tmp[n:2*n]
    for i in range(n): a(f"v_add_f32 v{regs[i]}, v{regs[i]}, v{bias[i]}")
    for i in range(n): a(f"v_mul_f32 v{t[i]}, {f32hex(LOG2E)}, v{regs[i]}")
    for i in range(n): a(f"v_min_f32 v{t[i]}, {f32hex(30.0)}, v{t[i]}")
    for i in range(n): a(f"v_exp_f32 v{t[i]}, v{t[i]}")
    a("s_nop 0")
    for i in range(n): a(f"v_add_f32 v{u[i]}, 2.0, v{t[i]}")
    for i in range(n): a(f"v_mul_f32 v{u[i]}, v{u[i]}, v{t[i]}")
    for i in range(n): a(f"v_add_f32 v{t[i]}, 2.0, v{u[i]}")
    for i in range(n): a(f"v_rcp_f32 v{t[i]}, v{t[i]}")
    a("s_nop 0")
    for i in range(n): a(f"v_mul_f32 v{u[i]}, v{u[i]}, v{t[i]}")
    for i in range(n): a(f"v_mul_f32 v{regs[i]}, v{regs[i]}, v{u[i]}")


def gen_k1(a):
    name = "proj_kernel"
    kernel_header(a, name)
    STG = 40960; XO = 0; WQO = 16384; W1O = 28672; NBUF = 3; NST = 8
    sX, sWQ, sW1, sB1, sWS, sW2, sGW = 16, 20, 24, 28, 32, 52, 56
    sRB, sCG, sW, sHC, sRT, sNH = 36, 37, 38, 39, 40, 41
    a("s_cmp_ge_u32 s2, 256")
    a("s_cbranch_scc1 K1_END")
    a("s_load_dwordx4 s[4:7], s[0:1], 0")
    a("s_load_dwordx4 s[8:11], s[0:1], 32")
    a("s_load_dwordx2 s[12:13], s[0:1], 80")
    a("s_load_dwordx4 s[60:63], s[0:1], 48")
    a("s_load_dwordx2 s[64:65], s[0:1], 16")
    a("s_and_b32 s44, s2, 7")
    a("s_lshr_b32 s45, s2, 3")
    if MAP84:
        a("s_and_b32 s46, s44, 1")
        a("s_lshl_b32 s46, s46, 3")
        a("s_and_b32 s47, s45, 7")
        a(f"s_add_u32 s{sRB}, s46, s47")
        a("s_lshr_b32 s46, s44, 1")
        a("s_lshl_b32 s46, s46, 2")
        a("s_lshr_b32 s47, s45, 3")
        a(f"s_add_u32 s{sCG}, s46, s47")
    else:
        a("s_and_b32 s46, s44, 3")
        a("s_lshl_b32 s46, s46, 2")
        a("s_and_b32 s47, s45, 3")
        a(f"s_add_u32 s{sRB}, s46, s47")
        a("s_lshr_b32 s46, s44, 2")
        a("s_lshl_b32 s46, s46, 3")
        a("s_lshr_b32 s47, s45, 2")
        a(f"s_add_u32 s{sCG}, s46, s47")
    a(f"s_mul_i32 s46, s{sCG}, 96")
    a(f"s_lshl_b32 s47, s{sCG}, 6")
    a("s_add_u32 s47, s47, 352")
    a(f"s_cmp_lt_u32 s{sCG}, 11")
    a(f"s_cselect_b32 s{sHC}, s46, s47")
    vLane, vT0, vT1, vT2, vT3 = 1, 2, 3, 4, 5
    a(f"v_and_b32 v{vLane}, 63, v0")
    a(f"v_lshrrev_b32 v{vT0}, 6, v0")
    a("s_nop 0")
    a(f"v_readfirstlane_b32 s{sW}, v{vT0}")
    a("s_waitcnt lgkmcnt(0)")
    srd(a, sX, 4, 2048 * 512 * 2)
    st = Stamps(a, 0); st()
    a(f"s_cmp_lt_u32 s{sW}, 8")
    a("s_cbranch_scc1 K1_COMP")
    sL = 42
    a(f"s_sub_u32 s{sL}, s{sW}, 8")
    vXo = 6; vWq = [7, 8, 9]; vW1 = [10, 11, 12]; vXo2 = 13
    a(f"v_lshrrev_b32 v{vT0}, 3, v{vLane}")
    a(f"v_and_b32 v{vT1}, 7, v{vLane}")
    a(f"v_lshrrev_b32 v{vT2}, 1, v{vT0}")
    a(f"v_xor_b32 v{vT3}, v{vT1}, v{vT2}")
    a(f"s_lshl_b32 s44, s{sRB}, 7")
    a(f"s_lshl_b32 s45, s{sL}, 5")
    a("s_add_u32 s44, s44, s45")
    a(f"v_add_u32 v{vT0}, s44, v{vT0}")
    a(f"v_lshlrev_b32 v{vT0}, 10, v{vT0}")
    a(f"v_lshl_add_u32 v{vXo}, v{vT3}, 4, v{vT0}")
    a(f"v_xor_b32 v{vT3}, 4, v{vT3}")
    a(f"v_lshl_add_u32 v{vXo2}, v{vT3}, 4, v{vT0}")
    sXd, sWd = 43, 50
    sRot, sKx, sKq, sK1 = 51, 68, 69, 45
    a(f"s_lshl_b32 s{sXd}, s{sL}, 12")
    a(f"s_mul_i32 s{sWd}, s{sL}, 3072")
    a("s_lshr_b32 s44, s2, 3")
    if MAP84:
        a("s_lshr_b32 s45, s44, 3")
        a("s_and_b32 s44, s44, 7")
    else:
        a("s_and_b32 s45, s44, 3")
        a("s_lshr_b32 s44, s44, 2")
    a("s_lshl_b32 s45, s45, 1")
    a("s_add_u32 s44, s44, s45")
    a(f"s_and_b32 s{sRot}, s44, {7 if ROTATE else 0}")
    a(f"s_lshl_b32 s{sKx}, s{sRot}, 7")
    for j in range(4):
        a(f"s_add_u32 m0, s{sXd}, {XO + j*1024}")
        a(f"s_add_u32 s44, s{sKx}, {j*8192}")
        a(f"buffer_load_dwordx4 v{vXo if j%2==0 else vXo2}, {sr(sX,4)}, s44 offen lds")
    srd(a, sWQ, 6, 512 * 1536 * 2)
    srd(a, sW1, 8, 512 * 1376 * 2)
    for j in range(3):
        a(f"v_add_u32 v{vT0}, {j*64}, v{vLane}")
        a(f"v_mul_u32_u24 v{vT1}, 43691, v{vT0}")
        a(f"v_lshrrev_b32 v{vT1}, 19, v{vT1}")
        a(f"v_mul_u32_u24 v{vT2}, 12, v{vT1}")
        a(f"v_sub_u32 v{vT2}, v{vT0}, v{vT2}")
        a(f"s_lshl_b32 s44, s{sL}, 4")
        a(f"v_add_u32 v{vT1}, s44, v{vT1}")
        a(f"v_mul_u32_u24 v{vT3}, 3072, v{vT1}")
        a(f"v_lshrrev_b32 v{vT0}, 2, v{vT2}")
        a(f"v_lshl_add_u32 v{vT3}, v{vT0}, 10, v{vT3}")
        a(f"v_and_b32 v{vT0}, 3, v{vT2}")
        a(f"v_lshl_add_u32 v{vT3}, v{vT0}, 4, v{vT3}")
        a(f"s_lshl_b32 s44, s{sCG}, 6")
        a(f"v_add_u32 v{vWq[j]}, s44, v{vT3}")
        a(f"v_mul_u32_u24 v{vT3}, 2752, v{vT1}")
        a(f"v_lshl_add_u32 v{vT3}, v{vT2}, 4, v{vT3}")
        a(f"s_lshl_b32 s44, s{sHC}, 1")
        a(f"v_add_u32 v{vW1[j]}, s44, v{vT3}")
    def dma_stage(s):
        base = (s % NBUF) * STG
        a(f"s_add_u32 s44, s{sRot}, {s}")
        a("s_and_b32 s44, s44, 7")
        a(f"s_lshl_b32 s{sKx}, s44, 7")
        a(f"s_mul_i32 s{sKq}, s44, {64*3072}")
        a(f"s_mul_i32 s{sK1}, s44, {64*2752}")
        for j in range(4 if s else 0):
            a(f"s_add_u32 m0, s{sXd}, {base + XO + j*1024}")
            a(f"s_add_u32 s44, s{sKx}, {j*8192}")
            a(f"buffer_load_dwordx4 v{vXo if j%2==0 else vXo2}, {sr(sX,4)}, s44 offen lds")
        for j in range(3):
            a(f"s_add_u32 m0, s{sWd}, {base + WQO + j*1024}")
            a("s_nop 0")
            a(f"buffer_load_dwordx4 v{vWq[j]}, {sr(sWQ,4)}, s{sKq} offen lds")
        for j in range(3):
            a(f"s_add_u32 m0, s{sWd}, {base + W1O + j*1024}")
            a("s_nop 0")
            a(f"buffer_load_dwordx4 v{vW1[j]}, {sr(sW1,4)}, s{sK1} offen lds")
    dma_stage(0)
    for s in range(NST):
        if s + 1 < NST:
            dma_stage(s + 1)
            a("s_waitcnt vmcnt(10)")
        else:
            a("s_waitcnt vmcnt(0)")
        a("s_barrier")
    a.lab("K1_END")
    a("s_endpgm")
    a.lab("K1_COMP")
    srd(a, sB1, 10, 1376 * 2)
    srd(a, sWS, 12, WS_SIZE)
    srd(a, sW2, 60, 1376 * 512 * 2)
    srd(a, sGW, 62, 512 * 2)
    srd(a, 64, 64, 512 * 512 * 2)
    a(f"v_lshrrev_b32 v{vT0}, 5, v{vLane}")
    a(f"v_lshlrev_b32 v{vT0}, 12, v{vT0}")
    a(f"v_and_b32 v{vT1}, 31, v{vLane}")
    a(f"v_lshl_add_u32 v{vT0}, v{vT1}, 1, v{vT0}")
    a(f"v_lshlrev_b32 v{vT2}, 4, v{vLane}")
    a(f"s_lshl_b32 s44, s{sRB}, 7")
    a(f"s_lshl_b32 s45, s{sCG}, 3")
    a("s_add_u32 s44, s44, s45")
    a(f"s_add_u32 s48, s44, s{sW}")
    a("s_lshl_b32 s45, s48, 10")
    a(f"buffer_load_dwordx4 v[32:35], v{vT2}, {sr(sX,4)}, s45 offen")
    a(f"buffer_load_dwordx4 v[36:39], v{vT2}, {sr(sGW,4)}, 0 offen")
    a("s_lshl_b32 s44, s2, 3")
    a(f"s_add_u32 s44, s44, s{sW}")
    a("s_cmp_ge_u32 s44, 1888")
    a("s_cbranch_scc1 K1_TRDONE")
    a("s_cmp_ge_u32 s44, 1376")
    a("s_cbranch_scc1 K1_TRWO")
    for (lab, srdn, dst) in (("", sW2, WS_W2T), ("K1_TRWO", 64, WS_WOT)):
        if lab:
            a.lab(lab)
            a("s_sub_u32 s44, s44, 1376")
        a("s_lshr_b32 s45, s44, 4")
        a("s_and_b32 s46, s44, 15")
        a("s_lshl_b32 s45, s45, 14")
        a("s_lshl_b32 s46, s46, 6")
        a("s_add_u32 s45, s45, s46")
        for j in range(8):
            ro = j if j < 4 else 8 + j - 4
            a(f"s_add_u32 s46, s45, {ro*1024}")
            a(f"buffer_load_ushort v{16+j}, v{vT0}, {sr(srdn,4)}, s46 offen")
        a("s_waitcnt vmcnt(0)")
        for p in range(4):
            a(f"v_lshl_or_b32 v{24+p}, v{16+2*p+1}, 16, v{16+2*p}")
        a("s_lshl_b32 s46, s44, 10")
        a(f"s_add_u32 s46, s46, {dst}")
        a(f"buffer_store_dwordx4 v[24:27], v{vT2}, {sr(sWS,4)}, s46 offen {WT}")
        if not lab:
            a("s_branch K1_TRDONE")
    a.lab("K1_TRDONE")
    a("s_waitcnt vmcnt(0)")
    for r in range(4):
        a(f"v_lshlrev_b32 v{40+2*r}, 16, v{36+r}")
        a(f"v_and_b32 v{40+2*r+1}, 0xffff0000, v{36+r}")
        a(f"v_lshlrev_b32 v{48+2*r}, 16, v{32+r}")
        a(f"v_and_b32 v{48+2*r+1}, 0xffff0000, v{32+r}")
    a("v_mul_f32 v56, v40, v48")
    for r in range(1, 8):
        a(f"v_fma_f32 v56, v{40+r}, v{48+r}, v56")
    for off in (0x041F, 0x081F, 0x101F, 0x201F, 0x401F):
        a(f"ds_swizzle_b32 v57, v56 offset:{off}")
        a("s_waitcnt lgkmcnt(0)")
        a("v_add_f32 v56, v56, v57")
    a("v_mov_b32 v57, v56")
    a("s_nop 1")
    a("v_permlane32_swap_b32 v56, v57")
    a("v_add_f32 v56, v56, v57")
    a(f"v_mul_f32 v56, {f32hex(-LOG2E)}, v56")
    a("v_exp_f32 v56, v56")
    a("s_nop 0")
    a("v_add_f32 v56, 1.0, v56")
    a("v_rcp_f32 v56, v56")
    a("s_lshl_b32 s45, s48, 2")
    a(f"s_add_u32 s45, s45, {WS_G}")
    a("v_mov_b32 v57, 0")
    a("s_mov_b64 exec, 1")
    a(f"buffer_store_dword v56, v57, {sr(sWS,4)}, s45 offen")
    a("s_mov_b64 exec, -1")
    a(f"s_lshr_b32 s{sRT}, s{sW}, 1")
    a(f"s_lshr_b32 s44, s{sW}, 2")
    a(f"s_xor_b32 s44, s44, s{sW}")
    a(f"s_and_b32 s{sNH}, s44, 1")
    vXa0 = [14, 15, 16, 17]
    vWa0 = 18
    vXa = [19, 20, 21, 22]; vWa = 23
    a(f"v_and_b32 v{vT0}, 31, v{vLane}")
    a(f"v_lshrrev_b32 v{vT1}, 5, v{vLane}")
    a(f"v_lshrrev_b32 v{vT2}, 1, v{vT0}")
    a(f"v_and_b32 v{vT2}, 7, v{vT2}")
    a(f"s_lshl_b32 s44, s{sRT}, 5")
    a(f"v_add_u32 v{vT0}, s44, v{vT0}")
    a(f"v_lshlrev_b32 v{vT0}, 7, v{vT0}")
    for kk in range(4):
        a(f"v_add_u32 v{vT3}, {2*kk}, v{vT1}")
        a(f"v_xor_b32 v{vT3}, v{vT3}, v{vT2}")
        a(f"v_lshl_add_u32 v{vXa0[kk]}, v{vT3}, 4, v{vT0}")
    a(f"v_lshrrev_b32 v{vT0}, 5, v{vLane}")
    a(f"v_lshlrev_b32 v{vT0}, 3, v{vT0}")
    a(f"v_bfe_u32 v{vT1}, v{vLane}, 2, 2")
    a(f"v_add_u32 v{vT0}, v{vT0}, v{vT1}")
    a(f"v_mul_u32_u24 v{vT0}, 192, v{vT0}")
    a(f"v_bfe_u32 v{vT1}, v{vLane}, 4, 1")
    a(f"v_lshl_add_u32 v{vT0}, v{vT1}, 5, v{vT0}")
    a(f"v_and_b32 v{vT1}, 3, v{vLane}")
    a(f"v_lshl_add_u32 v{vWa0}, v{vT1}, 3, v{vT0}")

    XF = [24, 28]
    WF = [[32, 36, 40], [44, 48, 52]]
    ACC = 64
    def acc(t): return ACC + t * 16
    a(f"s_cmp_eq_u32 s{sNH}, 1")
    a("s_cbranch_scc1 K1_NH1")

    def set_stage_addr(s):
        base = (s % NBUF) * STG
        for kk in range(4):
            a(f"v_add_u32 v{vXa[kk]}, {base + XO}, v{vXa0[kk]}")
        a(f"v_add_u32 v{vWa}, {base + WQO}, v{vWa0}")

    def mainloop(nh):
        tiles = [(0, 0, 'T'), (0, 64, 'T'), (12288, 0, 'T')] if nh == 0 else [(0, 128, 'N'), (12288, 64, 'T'), (12288, 128, 'T')]
        def reads(kk, b):
            a(f"ds_read_b128 {vr(XF[b],4)}, v{vXa[kk]}")
            for t, (reg, col, _) in enumerate(tiles):
                for half in range(2):
                    a(f"ds_read_b64_tr_b16 {vr(WF[b][t]+2*half,2)}, v{vWa} offset:{reg + col + (16*kk + 4*half)*192}")
        st.n = 1
        hts = [0] if nh == 0 else [1, 2]
        a(f"v_lshrrev_b32 v{vT0}, 5, v{vLane}")
        a(f"v_lshlrev_b32 v{vT0}, 3, v{vT0}")
        for k, hti in enumerate(hts):
            a(f"s_add_u32 s47, s{sHC}, {32*hti}")
            a("s_lshl_b32 s49, s47, 1")
            for g in range(4):
                a(f"buffer_load_dwordx2 {vr(128+8*k+2*g,2)}, v{vT0}, {sr(sB1,4)}, s49 offen offset:{16*g}")
        a("s_barrier")
        st()
        set_stage_addr(0)
        reads(0, 0)
        steps = [(s, kk) for s in range(NST) for kk in range(4)]
        for i, (s, kk) in enumerate(steps):
            b = i % 2
            a("s_waitcnt lgkmcnt(0)")
            if kk == 3 and s < NST - 1:
                a("s_barrier")
                set_stage_addr(s + 1)
            if i + 1 < len(steps):
                reads(steps[i + 1][1], 1 - b)
            for t, (reg, col, ori) in enumerate(tiles):
                cc = "0" if i == 0 else vr(acc(t), 16)
                if ori == 'T':
                    a(f"v_mfma_f32_32x32x16_bf16 {vr(acc(t),16)}, {vr(WF[b][t],4)}, {vr(XF[b],4)}, {cc}")
                else:
                    a(f"v_mfma_f32_32x32x16_bf16 {vr(acc(t),16)}, {vr(XF[b],4)}, {vr(WF[b][t],4)}, {cc}")
        st()
        vA, vB = 24, 25
        PK = 28
        vL32, vH = 26, 27
        BI = 40; BU = 48; TMP = list(range(112, 128))
        a(f"v_and_b32 v{vL32}, 31, v{vLane}")
        a(f"v_lshrrev_b32 v{vH}, 5, v{vLane}")
        a(f"s_lshl_b32 s44, s{sRB}, 2")
        a(f"s_add_u32 s46, s44, s{sRT}")
        a(f"v_lshlrev_b32 v{vA}, 4, v{vLane}")
        a("s_waitcnt vmcnt(0)")
        a("s_nop 7")
        def qk_store(t, wsbase, scale):
            r0 = acc(t)
            if scale:
                for r in range(16):
                    a(f"v_mul_f32 v{r0+r}, {f32hex(0.25*LOG2E)}, v{r0+r}")
            for p in range(8):
                a(f"v_cvt_pk_bf16_f32 v{PK+p}, v{r0+2*p}, v{r0+2*p+1}")
            a(f"s_lshl_b32 s47, s{sCG}, 17")
            a("s_lshl_b32 s48, s46, 10")
            a("s_add_u32 s47, s47, s48")
            a(f"s_add_u32 s47, s47, {wsbase}")
            a(f"buffer_store_dwordx4 {vr(PK,4)}, v{vA}, {sr(sWS,4)}, s47 offen {WT}")
            a("s_add_u32 s47, s47, 65536")
            a(f"buffer_store_dwordx4 {vr(PK+4,4)}, v{vA}, {sr(sWS,4)}, s47 offen {WT}")
            a("s_nop 1")
        def v_store(t):
            a(f"v_lshrrev_b32 v{vB}, 4, v{vL32}")
            a(f"v_lshlrev_b32 v{vB}, 16, v{vB}")
            a(f"v_lshl_add_u32 v{vB}, v{vH}, 8, v{vB}")
            a(f"v_and_b32 v{vT0}, 15, v{vL32}")
            a(f"v_lshl_add_u32 v{vB}, v{vT0}, 4, v{vB}")
            r0 = acc(t)
            for p in range(8):
                a(f"v_cvt_pk_bf16_f32 v{PK+p}, v{r0+2*p}, v{r0+2*p+1}")
            a(f"s_lshl_b32 s47, s{sCG}, 17")
            a("s_lshl_b32 s48, s46, 10")
            a("s_add_u32 s47, s47, s48")
            a(f"s_add_u32 s47, s47, {WS_V}")
            a(f"buffer_store_dwordx4 {vr(PK,4)}, v{vB}, {sr(sWS,4)}, s47 offen {WT}")
            a(f"buffer_store_dwordx4 {vr(PK+4,4)}, v{vB}, {sr(sWS,4)}, s47 offen offset:512 {WT}")
            a("s_nop 1")
        def h_store(t, hti):
            a(f"s_add_u32 s47, s{sHC}, {32*hti}")
            BI = 128 + 8 * hts.index(hti)
            for g in range(4):
                for d in range(2):
                    a(f"v_lshlrev_b32 v{BU+4*g+2*d}, 16, v{BI+2*g+d}")
                    a(f"v_and_b32 v{BU+4*g+2*d+1}, 0xffff0000, v{BI+2*g+d}")
            r0 = acc(t)
            for hf in range(2):
                mish_block(a, [r0 + 8*hf + i for i in range(8)], [BU + 8*hf + i for i in range(8)], TMP)
            for p in range(8):
                a(f"v_cvt_pk_bf16_f32 v{PK+p}, v{r0+2*p}, v{r0+2*p+1}")
            a("s_mul_i32 s48, s46, 86")
            a("s_lshr_b32 s49, s47, 4")
            a("s_add_u32 s48, s48, s49")
            a("s_lshl_b32 s48, s48, 10")
            a(f"s_add_u32 s48, s48, {WS_ACT}")
            a(f"buffer_store_dwordx4 {vr(PK,4)}, v{vA}, {sr(sWS,4)}, s48 offen")
            a(f"buffer_store_dwordx4 {vr(PK+4,4)}, v{vA}, {sr(sWS,4)}, s48 offen offset:1024")
            a("s_nop 1")
        if nh == 0:
            qk_store(0, WS_Q, True)
            qk_store(1, WS_K, False)
            h_store(2, 0)
        else:
            v_store(0)
            h_store(1, 1)
            a(f"s_cmp_ge_u32 s{sCG}, 11")
            a(f"s_cbranch_scc1 K1_SKIP2")
            h_store(2, 2)
            a.lab("K1_SKIP2")
        st()
        if STAMP: a("s_waitcnt vmcnt(0)")
        st()
        st.dump(sWS, sW, 12)
        a("s_endpgm")
    mainloop(0)
    a.lab("K1_NH1")
    mainloop(1)

    kernel_desc(a, name, 144)

def gen_k2(a):
    name = "attn_kernel"
    kernel_header(a, name)
    sWS = 16
    sHead, sQC, sW = 20, 21, 22
    sMaskLo = 24
    sFlag = 26
    KL = 0; VL = 65536; FL = 131072; RB = 131072 + 256
    CH = [0, 4, 16, 32, 48]
    a("s_cmp_ge_u32 s2, 256")
    a("s_cbranch_scc1 K2_END")
    a("s_load_dwordx2 s[12:13], s[0:1], 80")
    a("s_and_b32 s44, s2, 7")
    a("s_lshr_b32 s45, s2, 3")
    a("s_lshl_b32 s44, s44, 2")
    a("s_and_b32 s46, s45, 3")
    a(f"s_add_u32 s{sHead}, s44, s46")
    a(f"s_lshr_b32 s{sQC}, s45, 2")
    vLane, vT0, vT1, vT2 = 1, 2, 3, 4
    a(f"v_and_b32 v{vLane}, 63, v0")
    a(f"v_lshrrev_b32 v{vT0}, 6, v0")
    a("s_nop 0")
    a(f"v_readfirstlane_b32 s{sW}, v{vT0}")
    a("s_waitcnt lgkmcnt(0)")
    srd(a, sWS, 12, WS_SIZE)
    vL16 = 5
    st = Stamps(a, 1); st()
    a(f"v_lshlrev_b32 v{vL16}, 4, v{vLane}")
    a(f"s_lshl_b32 s44, s{sHead}, 16")
    a(f"s_cmp_lt_u32 s{sW}, 8")
    a("s_cbranch_scc1 K2_ATT")
    sL = 23
    a(f"s_sub_u32 s{sL}, s{sW}, 8")
    vFl = 6; vOne = 7
    a(f"v_mov_b32 v{vFl}, {FL}")
    a(f"v_mov_b32 v{vOne}, 1")
    a(f"s_lshl_b32 s45, s{sL}, 10")
    a("s_add_u32 s46, s44, s45")
    def issue_chunk(c):
        t0 = CH[c]; t1 = CH[c + 1] if c + 1 < len(CH) else 64
        for (wsb, ldsb) in ((WS_K, KL), (WS_V, VL)):
            for i in range((t1 - t0) // 4):
                a(f"s_add_u32 m0, s45, {ldsb + t0*1024 + i*4096}")
                a(f"s_add_u32 s47, s46, {wsb + t0*1024 + i*4096}")
                a(f"buffer_load_dwordx4 v{vL16}, {sr(sWS,4)}, s47 offen lds")
        return (t1 - t0) // 2
    def signal(c):
        a("s_mov_b64 exec, 1")
        a(f"ds_add_u32 v{vFl}, v{vOne} offset:{4*c}")
        a("s_mov_b64 exec, -1")
    st.n = 1
    issue_chunk(0)
    a(f"v_mov_b32 v{vT1}, 0")
    a(f"v_lshl_add_u32 v{vT0}, v{vLane}, 2, v{vFl}")
    a(f"ds_write_b32 v{vT0}, v{vT1}")
    for c in range(1, len(CH)):
        n = issue_chunk(c)
        if c == 1:
            a("s_waitcnt lgkmcnt(0)")
            a("s_barrier")
        a(f"s_waitcnt vmcnt({n})"); signal(c - 1)
    a("s_waitcnt vmcnt(0)"); signal(len(CH) - 1)
    st()
    ACC = 64
    FR = [8, 24, 40]
    sA, sB = 27, 28
    a(f"s_mul_i32 s47, s{sL}, 21")
    a(f"s_lshl_b32 s48, s{sHead}, 1")
    a("s_mul_i32 s48, s48, 86")
    a("s_add_u32 s48, s48, s47")
    a("s_lshl_b32 s48, s48, 10")
    a(f"s_add_u32 s{sA}, s48, {WS_ACT}")
    a("s_lshl_b32 s48, s47, 4")
    a(f"s_lshl_b32 s49, s{sQC}, 1")
    a("s_add_u32 s48, s48, s49")
    a("s_lshl_b32 s48, s48, 10")
    a(f"s_add_u32 s{sB}, s48, {WS_W2T}")
    def gl(i, fr):
        a(f"s_add_u32 s47, s{sA}, {i*1024}")
        a(f"buffer_load_dwordx4 {vr(fr,4)}, v{vL16}, {sr(sWS,4)}, s47 offen")
        a(f"s_add_u32 s47, s{sA}, {i*1024 + 86*1024}")
        a(f"buffer_load_dwordx4 {vr(fr+4,4)}, v{vL16}, {sr(sWS,4)}, s47 offen")
        a(f"s_add_u32 s47, s{sB}, {i*16384}")
        a(f"buffer_load_dwordx4 {vr(fr+8,4)}, v{vL16}, {sr(sWS,4)}, s47 offen")
        a(f"buffer_load_dwordx4 {vr(fr+12,4)}, v{vL16}, {sr(sWS,4)}, s47 offen offset:1024")
    def mm(fr, first):
        for aa in range(2):
            for bb in range(2):
                d = ACC + (aa * 2 + bb) * 16
                cc = "0" if first else vr(d, 16)
                a(f"v_mfma_f32_32x32x16_bf16 {vr(d,16)}, {vr(fr+8+4*bb,4)}, {vr(fr+4*aa,4)}, {cc}")
    NK = 21
    gl(0, FR[0]); gl(1, FR[1])
    for i in range(NK):
        if i + 2 < NK:
            gl(i + 2, FR[(i + 2) % 3])
            a("s_waitcnt vmcnt(8)")
        elif i + 1 < NK:
            a("s_waitcnt vmcnt(4)")
        else:
            a("s_waitcnt vmcnt(0)")
        mm(FR[i % 3], i == 0)
    a(f"s_cmp_ge_u32 s{sL}, 2")
    a("s_cbranch_scc1 K2_NOX")
    a(f"s_mul_i32 s48, s{sL}, 20")
    a("s_sub_u32 s48, 84, s48")
    a("s_lshl_b32 s49, s48, 10")
    a(f"s_add_u32 s{sA}, s{sA}, s49")
    a("s_lshl_b32 s49, s48, 14")
    a(f"s_add_u32 s{sB}, s{sB}, s49")
    gl(0, FR[0])
    a("s_waitcnt vmcnt(0)")
    mm(FR[0], False)
    a.lab("K2_NOX")
    a("s_nop 15")
    st()
    vRa = 8
    a(f"v_add_u32 v{vRa}, {RB}, v{vL16}")
    a(f"s_cmp_eq_u32 s{sL}, 3")
    a("s_cbranch_scc1 K2_RW")
    a(f"s_sub_u32 s48, 3, s{sL}")
    a.lab("K2_RSPIN")
    a(f"ds_read_b32 v{vT0}, v{vFl} offset:32")
    a("s_waitcnt lgkmcnt(0)")
    a(f"v_readfirstlane_b32 s47, v{vT0}")
    a("s_nop 3")
    a("s_cmp_ge_u32 s47, s48")
    a("s_cbranch_scc1 K2_RGO")
    a("s_sleep 4")
    a("s_branch K2_RSPIN")
    a.lab("K2_RGO")
    for half in range(2):
        for i in range(8):
            a(f"ds_read_b128 {vr(12+4*i,4)}, v{vRa} offset:{(8*half+i)*1024}")
        a("s_waitcnt lgkmcnt(0)")
        for i in range(32):
            a(f"v_add_f32 v{ACC+32*half+i}, v{ACC+32*half+i}, v{12+i}")
    a(f"s_cmp_eq_u32 s{sL}, 0")
    a("s_cbranch_scc1 K2_RST")
    a.lab("K2_RW")
    for i in range(16):
        a(f"ds_write_b128 v{vRa}, {vr(ACC+4*i,4)} offset:{i*1024}")
    a("s_waitcnt lgkmcnt(0)")
    a("s_mov_b64 exec, 1")
    a(f"ds_add_u32 v{vFl}, v{vOne} offset:32")
    a("s_waitcnt lgkmcnt(0)")
    a("s_mov_b64 exec, -1")
    st(); st(); st()
    st.dump(sWS, sW, 12)
    a("s_endpgm")
    a.lab("K2_RST")
    st.n = 3
    for aa in range(2):
        for bb in range(2):
            a(f"s_lshl_b32 s47, s{sHead}, 1")
            a(f"s_add_u32 s47, s47, {aa}")
            a("s_lshl_b32 s47, s47, 4")
            a(f"s_lshl_b32 s48, s{sQC}, 1")
            a("s_add_u32 s47, s47, s48")
            a(f"s_add_u32 s47, s47, {bb}")
            a("s_lshl_b32 s47, s47, 11")
            a(f"s_add_u32 s47, s47, {WS_B}")
            d0 = ACC + (aa*2+bb)*16
            for p in range(8):
                a(f"v_cvt_pk_bf16_f32 v{d0+p}, v{d0+2*p}, v{d0+2*p+1}")
            for i in range(2):
                a(f"buffer_store_dwordx4 {vr(d0+4*i,4)}, v{vL16}, {sr(sWS,4)}, s47 offen offset:{i*1024} {WT}")
    st(); st(); st()
    st.dump(sWS, sW, 12)
    a.lab("K2_END")
    a("s_endpgm")
    a.lab("K2_ATT")
    st.n = 1
    QF = 8
    a(f"s_lshl_b32 s47, s{sQC}, 3")
    a(f"s_add_u32 s47, s47, s{sW}")
    a("s_lshl_b32 s47, s47, 10")
    a("s_add_u32 s47, s47, s44")
    a(f"s_add_u32 s47, s47, {WS_Q}")
    a(f"buffer_load_dwordx4 {vr(QF,4)}, v{vL16}, {sr(sWS,4)}, s47 offen")
    MN = 16
    S = [32, 48]
    O = 64
    P = 80
    KF = [88, 92, 96]
    VF = [100, 104, 108, 112]
    vKa, vVa = 6, 7
    vRun = 12; vFl = 13
    a(f"v_mov_b32 v{vFl}, {FL}")
    a(f"v_mov_b32 v{vT1}, 0")
    a(f"v_and_b32 v{vT0}, 31, v{vLane}")
    a(f"v_mov_b32 v{vT2}, 0x3f803f80")
    a(f"v_and_b32 v14, 27, v{vT0}")
    a("v_cmp_eq_u32 vcc, 16, v14")
    a("s_nop 1")
    a(f"v_cndmask_b32 v{vT1}, v{vT1}, v{vT2}, vcc")
    for b in VF:
        for r in range(4):
            a(f"v_mov_b32 v{b+r}, v{vT1}")
    a(f"v_cmp_gt_u32 vcc, 16, v{vT0}")
    a("s_nop 1")
    a(f"s_mov_b64 {sr(sMaskLo,2)}, vcc")
    a(f"v_mov_b32 v{vKa}, v{vL16}")
    a(f"v_lshrrev_b32 v{vT1}, 5, v{vLane}")
    a(f"v_lshlrev_b32 v{vT1}, 8, v{vT1}")
    a(f"v_and_b32 v{vT2}, 15, v{vLane}")
    a(f"v_lshl_add_u32 v{vVa}, v{vT2}, 4, v{vT1}")
    a(f"v_add_u32 v{vVa}, {VL}, v{vVa}")
    lc = [0]
    def wait_chunk(c):
        lc[0] += 1
        lb = f"K2_WC{lc[0]}"
        a.lab(lb)
        a(f"ds_read_b32 v{vT0}, v{vFl} offset:{4*c}")
        a("s_waitcnt lgkmcnt(0)")
        a(f"v_readfirstlane_b32 s47, v{vT0}")
        a("s_nop 3")
        a("s_cmp_ge_u32 s47, 4")
        a(f"s_cbranch_scc1 {lb}D")
        a("s_sleep 2")
        a(f"s_branch {lb}")
        a.lab(lb + "D")
    a("s_barrier")
    st()
    wait_chunk(0)
    a("s_waitcnt vmcnt(0)")
    st()
    a(f"ds_read_b128 {vr(KF[0],4)}, v{vKa}")
    a("s_waitcnt lgkmcnt(0)")
    a(f"v_mfma_f32_32x32x16_bf16 {vr(S[0],16)}, {vr(KF[0],4)}, {vr(QF,4)}, 0")
    a("s_nop 15")
    a(f"v_max3_f32 v{vRun}, v{S[0]}, v{S[0]+1}, v{S[0]+2}")
    for r in range(3, 15, 2):
        a(f"v_max3_f32 v{vRun}, v{vRun}, v{S[0]+r}, v{S[0]+r+1}")
    a(f"v_max_f32 v{vRun}, v{vRun}, v{S[0]+15}")
    a(f"v_mov_b32 v{vT1}, v{vRun}")
    a("s_nop 1")
    a(f"v_permlane32_swap_b32 v{vRun}, v{vT1}")
    a(f"v_max_f32 v{vRun}, v{vRun}, v{vT1}")
    a(f"v_sub_f32 v{vRun}, 0, v{vRun}")
    for r in range(16):
        a(f"v_mov_b32 v{MN+r}, v{vRun}")
    a(f"s_mov_b32 s{sFlag}, 0")
    st()
    NT = 64
    a.lab("K2_PASS2")
    def rdK(t):
        a(f"ds_read_b128 {vr(KF[t%3],4)}, v{vKa} offset:{t*1024}")
    def rdV(t):
        a(f"s_mov_b64 exec, {sr(sMaskLo,2)}")
        for g in range(2):
            a(f"ds_read_b128 {vr(VF[(t%2)*2+g],4)}, v{vVa} offset:{(2*t+g)*512}")
        a("s_mov_b64 exec, -1")
    rdK(0); rdK(1); rdV(0)
    a("s_waitcnt lgkmcnt(0)")
    a(f"v_mfma_f32_32x32x16_bf16 {vr(S[0],16)}, {vr(KF[0],4)}, {vr(QF,4)}, {vr(MN,16)}")
    a("s_nop 7")
    for t in range(NT):
        sb = S[t % 2]
        if (t + 2) in CH[1:]:
            wait_chunk(CH.index(t + 2))
        if t + 2 < NT: rdK(t + 2)
        if t + 1 < NT: rdV(t + 1)
        nout = (1 if t + 2 < NT else 0) + (2 if t + 1 < NT else 0)
        a(f"s_waitcnt lgkmcnt({nout})")
        if t + 1 < NT:
            a(f"v_mfma_f32_32x32x16_bf16 {vr(S[(t+1)%2],16)}, {vr(KF[(t+1)%3],4)}, {vr(QF,4)}, {vr(MN,16)}")
        for g in range(2):
            for r in range(8):
                a(f"v_exp_f32 v{sb+8*g+r}, v{sb+8*g+r}")
            for p in range(4):
                a(f"v_cvt_pk_bf16_f32 v{P+4*g+p}, v{sb+8*g+2*p}, v{sb+8*g+2*p+1}")
            a("s_nop 1")
            cc = "0" if (t == 0 and g == 0) else vr(O, 16)
            a(f"v_mfma_f32_32x32x16_bf16 {vr(O,16)}, {vr(VF[(t%2)*2+g],4)}, {vr(P+4*g,4)}, {cc}")
    a("s_nop 15")
    a(f"s_cmp_eq_u32 s{sFlag}, 1")
    a("s_cbranch_scc1 K2_EPI")
    a(f"v_cmp_ngt_f32 vcc, {f32hex(2.0**60)}, v{O+8}")
    a("s_nop 4")
    a("s_cmp_eq_u64 vcc, 0")
    a("s_cbranch_scc1 K2_EPI")
    a(f"v_mov_b32 v{vRun}, 0xff800000")
    a("s_mov_b32 s47, 0")
    a(f"v_mov_b32 v{vT0}, v{vKa}")
    a.lab("K2_P1LOOP")
    a(f"ds_read_b128 {vr(KF[0],4)}, v{vT0}")
    a("s_waitcnt lgkmcnt(0)")
    a(f"v_mfma_f32_32x32x16_bf16 {vr(S[0],16)}, {vr(KF[0],4)}, {vr(QF,4)}, 0")
    a("s_nop 15")
    for r in range(0, 16, 2):
        a(f"v_max3_f32 v{vRun}, v{vRun}, v{S[0]+r}, v{S[0]+r+1}")
    a(f"v_add_u32 v{vT0}, 1024, v{vT0}")
    a("s_add_u32 s47, s47, 1")
    a("s_cmp_lt_u32 s47, 64")
    a("s_cbranch_scc1 K2_P1LOOP")
    a(f"v_mov_b32 v{vT1}, v{vRun}")
    a("s_nop 1")
    a(f"v_permlane32_swap_b32 v{vRun}, v{vT1}")
    a(f"v_max_f32 v{vRun}, v{vRun}, v{vT1}")
    a(f"v_sub_f32 v{vRun}, 0, v{vRun}")
    for r in range(16):
        a(f"v_mov_b32 v{MN+r}, v{vRun}")
    a(f"s_mov_b32 s{sFlag}, 1")
    a("s_branch K2_PASS2")
    a.lab("K2_EPI")
    st()
    a(f"v_rcp_f32 v{vT0}, v{O+8}")
    a("s_nop 0")
    for r in range(8):
        a(f"v_mul_f32 v{O+r}, v{O+r}, v{vT0}")
    for p in range(4):
        a(f"v_cvt_pk_bf16_f32 v{P+p}, v{O+2*p}, v{O+2*p+1}")
    a(f"s_lshl_b32 s47, s{sQC}, 3")
    a(f"s_add_u32 s47, s47, s{sW}")
    a("s_lshl_b32 s47, s47, 5")
    a(f"s_add_u32 s47, s47, s{sHead}")
    a("s_lshl_b32 s47, s47, 10")
    a(f"s_add_u32 s47, s47, {WS_O}")
    a(f"buffer_store_dwordx4 {vr(P,4)}, v{vL16}, {sr(sWS,4)}, s47 offen")
    if STAMP: a("s_waitcnt vmcnt(0)")
    st()
    st.dump(sWS, sW, 12)
    a("s_endpgm")

    kernel_desc(a, name, 128)

def gen_k3(a):
    name = "out_kernel"
    kernel_header(a, name)
    sWS, sOut = 16, 36
    sRB, sCB, sW, sWM, sWN = 40, 41, 42, 43, 49
    a("s_cmp_ge_u32 s2, 256")
    a("s_cbranch_scc1 K3_END")
    a("s_load_dwordx2 s[12:13], s[0:1], 64")
    a("s_load_dwordx2 s[14:15], s[0:1], 80")
    a("s_and_b32 s44, s2, 7")
    a("s_lshr_b32 s45, s2, 3")
    a("s_lshl_b32 s44, s44, 2")
    a("s_and_b32 s46, s45, 3")
    a(f"s_add_u32 s{sRB}, s44, s46")
    a(f"s_lshr_b32 s{sCB}, s45, 2")
    vLane, vT0, vT1, vL16 = 1, 2, 3, 4
    a(f"v_and_b32 v{vLane}, 63, v0")
    a(f"v_lshrrev_b32 v{vT0}, 6, v0")
    a(f"v_lshlrev_b32 v{vL16}, 4, v{vLane}")
    a(f"v_readfirstlane_b32 s{sW}, v{vT0}")
    a("s_waitcnt lgkmcnt(0)")
    srd(a, sWS, 14, WS_SIZE)
    srd(a, sOut, 12, 2048 * 512 * 2)
    st = Stamps(a, 2); st()
    a(f"s_lshr_b32 s{sWM}, s{sW}, 1")
    a(f"s_and_b32 s{sWN}, s{sW}, 1")
    FR = 96
    ACC = 32
    BB = 8
    vTok = 5; vG = 6
    a(f"s_lshl_b32 s44, s{sRB}, 6")
    a(f"s_lshl_b32 s45, s{sW}, 3")
    a("s_add_u32 s44, s44, s45")
    a("s_lshl_b32 s44, s44, 10")
    a(f"s_add_u32 s44, s44, {WS_O}")
    a(f"s_lshl_b32 s45, s{sW}, 7")
    a(f"s_lshl_b32 s46, s{sCB}, 1")
    a("s_add_u32 s45, s45, s46")
    a("s_lshl_b32 s45, s45, 10")
    a(f"s_add_u32 s45, s45, {WS_WOT}")
    for i in range(8):
        fr = FR + 16 * i
        a(f"s_add_u32 s46, s44, {i*1024}")
        a(f"buffer_load_dwordx4 {vr(fr,4)}, v{vL16}, {sr(sWS,4)}, s46 offen")
        a(f"s_add_u32 s46, s44, {i*1024 + 32768}")
        a(f"buffer_load_dwordx4 {vr(fr+4,4)}, v{vL16}, {sr(sWS,4)}, s46 offen")
        a(f"s_add_u32 s46, s45, {i*16384}")
        a(f"buffer_load_dwordx4 {vr(fr+8,4)}, v{vL16}, {sr(sWS,4)}, s46 offen")
        a(f"buffer_load_dwordx4 {vr(fr+12,4)}, v{vL16}, {sr(sWS,4)}, s46 offen offset:1024")
    a(f"v_and_b32 v{vT0}, 31, v{vLane}")
    a(f"s_lshl_b32 s44, s{sRB}, 6")
    a(f"s_lshl_b32 s45, s{sWM}, 5")
    a("s_add_u32 s44, s44, s45")
    a(f"v_add_u32 v{vTok}, s44, v{vT0}")
    a(f"v_lshlrev_b32 v{vT0}, 2, v{vTok}")
    a(f"s_mov_b32 s44, {WS_G}")
    a(f"buffer_load_dword v{vG}, v{vT0}, {sr(sWS,4)}, s44 offen")
    a(f"s_lshl_b32 s47, s{sRB}, 1")
    a(f"s_add_u32 s47, s47, s{sWM}")
    a("s_lshl_b32 s47, s47, 4")
    a(f"s_lshl_b32 s48, s{sCB}, 1")
    a("s_add_u32 s47, s47, s48")
    a(f"s_add_u32 s47, s47, s{sWN}")
    a("s_lshl_b32 s47, s47, 11")
    a(f"s_add_u32 s47, s47, {WS_B}")
    for i in range(2):
        a(f"buffer_load_dwordx4 {vr(BB+8+4*i,4)}, v{vL16}, {sr(sWS,4)}, s47 offen offset:{i*1024}")
    st()
    for i in range(8):
        fr = FR + 16 * i
        a(f"s_waitcnt vmcnt({3 + 4*(7-i)})")
        if i == 0: st()
        for aa in range(2):
            for bb in range(2):
                d = ACC + (aa * 2 + bb) * 16
                cc = "0" if i == 0 else vr(d, 16)
                a(f"v_mfma_f32_32x32x16_bf16 {vr(d,16)}, {vr(fr+8+4*bb,4)}, {vr(fr+4*aa,4)}, {cc}")
    st()
    a(f"s_lshl_b32 s44, s{sW}, 12")
    a(f"v_add_u32 v{vT0}, s44, v{vL16}")
    a("s_nop 15")
    for own in range(4):
        a(f"s_cmp_eq_u32 s{sW}, {own}")
        a(f"s_cbranch_scc1 K3_SK{own}")
        for i in range(4):
            a(f"ds_write_b128 v{vT0}, {vr(ACC+16*own+4*i,4)} offset:{own*16384 + i*1024}")
        a.lab(f"K3_SK{own}")
    for own in range(4):
        a(f"s_cmp_lg_u32 s{sW}, {own}")
        a(f"s_cbranch_scc1 K3_MV{own}")
        for r in range(16):
            a(f"v_mov_b32 v{FR+r}, v{ACC+16*own+r}")
        a.lab(f"K3_MV{own}")
    a("s_waitcnt lgkmcnt(0)")
    a("s_barrier")
    a(f"s_lshl_b32 s44, s{sW}, 14")
    a(f"v_add_u32 v{vT0}, s44, v{vL16}")
    for src in range(4):
        for i in range(4):
            a(f"ds_read_b128 {vr(ACC+16*src+4*i,4)}, v{vT0} offset:{src*4096 + i*1024}")
    a("s_waitcnt vmcnt(0)")
    for p in range(8):
        a(f"v_lshlrev_b32 v{BB+2*p}, 16, v{BB+8+p}")
        a(f"v_and_b32 v{BB+2*p+1}, 0xffff0000, v{BB+8+p}")
    a("s_waitcnt lgkmcnt(0)")
    for src in range(4):
        a(f"s_cmp_eq_u32 s{sW}, {src}")
        a(f"s_cbranch_scc1 K3_AD{src}")
        for r in range(16):
            a(f"v_add_f32 v{FR+r}, v{FR+r}, v{ACC+16*src+r}")
        a.lab(f"K3_AD{src}")
    for r in range(16):
        a(f"v_sub_f32 v{FR+r}, v{FR+r}, v{BB+r}")
    for r in range(16):
        a(f"v_fma_f32 v{FR+r}, v{vG}, v{FR+r}, v{BB+r}")
    for p in range(8):
        a(f"v_cvt_pk_bf16_f32 v{BB+p}, v{FR+2*p}, v{FR+2*p+1}")
    a("s_nop 1")
    a(f"v_permlane32_swap_b32 v{BB}, v{BB+2}")
    a(f"v_permlane32_swap_b32 v{BB+1}, v{BB+3}")
    a(f"v_permlane32_swap_b32 v{BB+4}, v{BB+6}")
    a(f"v_permlane32_swap_b32 v{BB+5}, v{BB+7}")
    a(f"v_lshlrev_b32 v{vT0}, 10, v{vTok}")
    a(f"v_lshrrev_b32 v{vT1}, 5, v{vLane}")
    a(f"v_lshl_add_u32 v{vT0}, v{vT1}, 4, v{vT0}")
    a(f"s_lshl_b32 s44, s{sCB}, 7")
    a(f"s_lshl_b32 s45, s{sWN}, 6")
    a("s_add_u32 s44, s44, s45")
    a(f"buffer_store_dwordx4 {vr(BB,4)}, v{vT0}, {sr(sOut,4)}, s44 offen")
    a(f"buffer_store_dwordx4 {vr(BB+4,4)}, v{vT0}, {sr(sOut,4)}, s44 offen offset:32")
    st()
    if STAMP: a("s_waitcnt vmcnt(0)")
    st()
    st.dump(sWS, sW, 4)
    a.lab("K3_END")
    a("s_endpgm")
    kernel_desc(a, name, 224)

def main():
    a = A()
    hdr = open(f"cdna_kernels/{NAME}.s.ref").read().splitlines()
    for ln in hdr:
        if ln.startswith("; @launch") or ln.startswith("; Override") or ln.startswith("; grid=ceil"):
            continue
        if not ln.startswith(";"):
            break
        a.raw(ln)
    a.raw("; @launch kernel=proj_kernel grid=(256,1,1) block=(768,1,1) lds=122880")
    a.raw("; @launch kernel=attn_kernel grid=(256,1,1) block=(768,1,1) lds=147712")
    a.raw("; @launch kernel=out_kernel grid=(256,1,1) block=(256,1,1) lds=65536")
    a.raw('.amdgcn_target "amdgcn-amd-amdhsa--gfx950"')
    gen_k1(a)
    gen_k2(a)
    gen_k3(a)
    out = sys.argv[1] if len(sys.argv) > 1 else f"cdna_kernels/{NAME}.s"
    open(out, "w").write("\n".join(a.l) + "\n")
main()
```
